```python
import torch

def _softmax(x, axis=-1):
    return torch.softmax(x, dim=axis)
def _gelu(x):
    return torch.nn.functional.gelu(x, approximate="tanh")
def _silu(x):
    return torch.nn.functional.silu(x)
def _sigmoid(x):
    return torch.sigmoid(x)
def _layernorm(x, axis=-1, eps=1e-5):
    m = x.mean(dim=axis, keepdim=True)
    v = x.var(dim=axis, keepdim=True, unbiased=False)
    return (x - m) / torch.sqrt(v + eps)
def _scatter_add(tgt, idx, src, axis=0):
    return tgt.clone().index_add_(axis, idx, src)
def _segment_sum(src, seg, n):
    out = torch.zeros((n,) + src.shape[1:], dtype=src.dtype)
    return out.index_add_(0, seg, src)
def _pad(x, pw):
    flat = tuple(v for pair in reversed(pw) for v in pair)
    return torch.nn.functional.pad(x, flat)

kernel_name = 'concat_heads__mha_block_cached__gqa_block_cached__near_ridge'

def setup_inputs():

    _w = (lambda a: (lambda t: t.to(torch.bfloat16) if t.is_floating_point() else t)(torch.as_tensor(a)))
    def _A_setup():
        B, Sq, D = 8, 256, 512
        H, Sk, Dh = 32, 1024, 128
        return {
            "x": _w((lambda *s: torch.randn(*s, dtype=torch.bfloat16) * 0.8)(B, Sq, D)),
            "k_cache": _w((lambda *s: torch.randn(*s, dtype=torch.bfloat16) * 0.8)(B, H, Sk, Dh)),
            "v_cache": _w((lambda *s: torch.randn(*s, dtype=torch.bfloat16) * 0.05)(B, H, Sk, Dh)),
            "wq": _w((lambda *s: torch.randn(*s, dtype=torch.bfloat16) * 0.8)(D, H * Dh) * (D ** -0.5)),
            "wo": _w((lambda *s: torch.randn(*s, dtype=torch.bfloat16) * 0.05)(H * Dh, D) * ((H * Dh) ** -0.5)),
        }
    _A_in = _A_setup()

    def _B_setup():
        B, Sq, D = 8, 256, 512
        Hq, Hkv, Sk, Dh = 32, 32, 1024, 128
        assert Hq % Hkv == 0, (Hq, Hkv)
        return {
            "x": _w((lambda *s: torch.randn(*s, dtype=torch.bfloat16) * 0.8)(B, Sq, D)),
            "k_cache": _w((lambda *s: torch.randn(*s, dtype=torch.bfloat16) * 0.8)(B, Hkv, Sk, Dh)),
            "v_cache": _w((lambda *s: torch.randn(*s, dtype=torch.bfloat16) * 0.05)(B, Hkv, Sk, Dh)),
            "wq": _w((lambda *s: torch.randn(*s, dtype=torch.bfloat16) * 0.8)(D, Hq * Dh) * (D ** -0.5)),
            "wo": _w((lambda *s: torch.randn(*s, dtype=torch.bfloat16) * 0.05)(Hq * Dh, D) * ((Hq * Dh) ** -0.5)),
        }
    _B_in = _B_setup()

    return {
        "A_x": _A_in["x"],
        "A_k_cache": _A_in["k_cache"],
        "A_v_cache": _A_in["v_cache"],
        "A_wq": _A_in["wq"],
        "A_wo": _A_in["wo"],
        "B_x": _B_in["x"],
        "B_k_cache": _B_in["k_cache"],
        "B_v_cache": _B_in["v_cache"],
        "B_wq": _B_in["wq"],
        "B_wo": _B_in["wo"],
    }

def reference(A_x, A_k_cache, A_v_cache, A_wq, A_wo, B_x, B_k_cache, B_v_cache, B_wq, B_wo):
    def _A_ref(x, k_cache, v_cache, wq, wo):
        B, Sq, D = x.shape
        H, Dh = 32, 128
        q = (lambda x, *d: x.permute(*d))((x @ wq).reshape(B, Sq, H, Dh), 0, 2, 1, 3)
        scores = torch.einsum("bhqd,bhkd->bhqk", q, k_cache) * (Dh ** -0.5)
        p = _softmax(scores, axis=-1)
        o = torch.einsum("bhqk,bhkd->bhqd", p, v_cache)
        return (lambda x, *d: x.permute(*d))(o, 0, 2, 1, 3).reshape(B, Sq, H * Dh) @ wo

    def _B_ref(x, k_cache, v_cache, wq, wo):
        B, Sq, D = x.shape
        Hq, Dh = 32, 128
        Hkv = k_cache.shape[1]
        rep = Hq // Hkv
        q = (lambda x, *d: x.permute(*d))((x @ wq).reshape(B, Sq, Hq, Dh), 0, 2, 1, 3)
        k = (lambda x, n, axis: torch.repeat_interleave(x, n, dim=axis))(k_cache, rep, axis=1)
        v = (lambda x, n, axis: torch.repeat_interleave(x, n, dim=axis))(v_cache, rep, axis=1)
        scores = torch.einsum("bhqd,bhkd->bhqk", q, k) * (Dh ** -0.5)
        p = _softmax(scores, axis=-1)
        o = torch.einsum("bhqk,bhkd->bhqd", p, v)
        return (lambda x, *d: x.permute(*d))(o, 0, 2, 1, 3).reshape(B, Sq, Hq * Dh) @ wo

    a = _A_ref(A_x, A_k_cache, A_v_cache, A_wq, A_wo)
    b = _B_ref(B_x, B_k_cache, B_v_cache, B_wq, B_wo)
    return torch.concatenate([a, b], axis=-1)
```

```python
import re

def expand(op):
    op = op.strip()
    op = op.lstrip('-').replace('abs(', '').replace('|', '').rstrip(')')
    m = re.fullmatch(r'([vas])\[(\d+):(\d+)\]', op)
    if m:
        return [f"{m.group(1)}{i}" for i in range(int(m.group(2)), int(m.group(3))+1)]
    m = re.fullmatch(r'([vas])(\d+)', op)
    if m: return [op]
    if op in ('vcc', 'exec'): return [op]
    if op in ('m0', 'scc', 'vcc_lo', 'vcc_hi', 'exec_lo', 'exec_hi'): return [op.split('_')[0]]
    return []

TRANS = ('v_exp_f32', 'v_rcp_f32', 'v_log_f32', 'v_rsq_f32', 'v_sqrt_f32')

class Ins:
    __slots__ = ('text', 'mn', 'ops', 'rd', 'wr', 'kind', 'mods')
    def __init__(self, text):
        self.text = text
        t = text.split(';')[0].strip()
        parts = t.split(None, 1)
        self.mn = mn = parts[0] if parts else ''
        rest = parts[1] if len(parts) > 1 else ''
        ops = [o.strip() for o in rest.split(',')] if rest else []
        self.mods = ''
        if ops:
            sp = ops[-1].split(None, 1)
            ops[-1] = sp[0]
            self.mods = sp[1] if len(sp) > 1 else ''
        self.ops = ops
        rd, wr = [], []
        E = expand
        if mn.endswith(':') or mn.startswith('.') or mn == '':
            self.kind = 'x'
        elif mn.startswith('v_mfma'):
            self.kind = 'm'; wr = E(ops[0]); rd = E(ops[1]) + E(ops[2]) + E(ops[3])
        elif mn.startswith('ds_read'):
            self.kind = 'l'; wr = E(ops[0]); rd = E(ops[1])
        elif mn.startswith('ds_'):
            self.kind = 'l'; rd = sum((E(o) for o in ops), [])
        elif mn.startswith('buffer_load') or mn.startswith('global_load'):
            self.kind = 'g'
            if ' lds' in (' ' + self.mods) or mn.startswith('global_load_lds'):
                rd = sum((E(o) for o in ops), []) + ['m0']
            else:
                wr = E(ops[0]); rd = sum((E(o) for o in ops[1:]), [])
        elif mn.startswith('buffer_store') or mn.startswith('global_store') or mn.startswith('buffer_wbl2') or mn.startswith('buffer_inv') or mn.startswith('global_atomic') or mn.startswith('buffer_atomic'):
            self.kind = 'g'; rd = sum((E(o) for o in ops), [])
            if 'atomic' in mn and 'sc0' in self.mods:
                wr = E(ops[0]); rd = sum((E(o) for o in ops[1:]), [])
        elif mn.startswith('v_'):
            self.kind = 'e' if mn.replace('_e32', '').replace('_e64', '') in TRANS else 'v'
            if mn.startswith('v_permlane') and 'swap' in mn or mn.startswith('v_swap'):
                rd = E(ops[0]) + E(ops[1]); wr = list(rd)
            elif mn.startswith('v_cmp'):
                wr = E(ops[0]); rd = sum((E(o) for o in ops[1:]), [])
            elif mn.startswith('v_nop'):
                pass
            else:
                wr = E(ops[0]); rd = sum((E(o) for o in ops[1:]), [])
                if mn.startswith('v_fmac') or mn.startswith('v_dot2c'): rd += wr
                if mn.startswith('v_cndmask') and len(ops) == 3: rd.append('vcc')
                if '_co_' in mn: wr += E(ops[1])
        elif mn.startswith('s_'):
            self.kind = 's'
            if mn.startswith(('s_cmp', 's_bitcmp')):
                rd = sum((E(o) for o in ops), []); wr = ['scc']
            elif mn.startswith(('s_waitcnt', 's_barrier', 's_nop', 's_branch', 's_endpgm', 's_setprio', 's_sleep')):
                pass
            elif mn.startswith('s_cbranch'):
                rd = ['scc'] if 'scc' in mn else (['vcc'] if 'vcc' in mn else ['exec'])
            elif mn.startswith(('s_load', 's_memtime', 's_memrealtime', 's_getpc', 's_getreg')):
                wr = E(ops[0]); rd = sum((E(o) for o in ops[1:]), [])
            else:
                wr = E(ops[0]); rd = sum((E(o) for o in ops[1:]), [])
                if mn.startswith(('s_cselect', 's_addc', 's_subb')): rd.append('scc')
                if not mn.startswith(('s_mov', 's_cselect', 's_mul', 's_movk')): wr.append('scc')
        else:
            raise ValueError("unknown instr: " + text)
        self.rd, self.wr = rd, wr
    def states(self):
        if self.kind == 'x': return 0
        if self.mn == 's_nop': return int(self.ops[0]) + 1
        return 1
    def passes(self):
        return 8 if '32x32' in self.mn else 4

def hazard_need(trace, i):
    c = trace[i]
    if c.kind == 'x': return 0, ''
    need, why = 0, ''
    dist = 0
    crd, cwr = set(c.rd), set(c.wr)
    j = i - 1
    while j >= 0 and dist < 24:
        p = trace[j]
        if p.kind != 'x':
            req = 0
            pw, pr = set(p.wr), set(p.rd)
            isv = lambda k: k in ('v', 'e')
            vregs = lambda s: {r for r in s if r[0] in 'va' and r not in ('vcc',)}
            sregs = lambda s: {r for r in s if r[0] == 's' and r != 'scc'} | ({'vcc'} & s)
            if isv(p.kind) and c.kind == 'm' and vregs(pw) & crd: req = max(req, 2)
            if p.kind == 'm':
                n = p.passes()
                D = set(p.wr)
                if c.kind == 'm':
                    C = set(expand(c.ops[3])); AB = set(expand(c.ops[1]) + expand(c.ops[2]))
                    if D & AB: req = max(req, {4: 8, 8: 12}[n])
                    if D & C:
                        if not (expand(c.ops[3]) == p.wr and c.passes() == n): req = max(req, {4: 6, 8: 10}[n])
                    if D & set(c.wr) and not (D & C): req = max(req, {4: 6, 8: 10}[n])
                elif c.kind in ('v', 'e', 'l', 'g'):
                    if D & (crd | cwr): req = max(req, {4: 8, 8: 12}[n])
                    if isv(c.kind) and set(expand(p.ops[3])) & cwr: req = max(req, {4: 3, 8: 7}[n])
            if p.kind == 'e' and isv(c.kind) and pw & crd: req = max(req, 1)
            if p.kind == 'e' and c.kind in ('l', 'g') and pw & crd: req = max(req, 1)
            if isv(p.kind) and c.mn.startswith('v_permlane') and pw & crd: req = max(req, 2)
            if isv(p.kind) and c.mn.startswith(('v_readfirstlane', 'v_readlane')) and vregs(pw) & crd: req = max(req, 1)
            if isv(p.kind) and c.kind == 'g' and sregs(pw) & crd: req = max(req, 5)
            if isv(p.kind) and isv(c.kind) and sregs(pw) & crd: req = max(req, 2)
            if isv(p.kind) and c.kind == 's' and sregs(pw) & crd: req = max(req, 1)
            if p.kind == 's' and 'm0' in pw and 'm0' in crd and c.kind in ('g', 'l'): req = max(req, 1)
            if p.kind == 'g' and 'store' in p.mn and ('x4' in p.mn or 'x3' in p.mn):
                data = set(expand(p.ops[0] if p.mn.startswith('buffer') else p.ops[1]))
                if data & cwr: req = max(req, 2)
            if p.kind == 's' and 'exec' in pw and c.kind == 'm': pass
            if req - dist > need: need, why = req - dist, f"{p.text} -> {c.text}"
            dist += p.states()
        j -= 1
    return need, why

def fix_hazards(lst, prev=()):
    out = list(prev); n0 = len(out); added = 0
    for ins in lst:
        out.append(ins)
        need, why = hazard_need(out, len(out)-1)
        if need > 0:
            out.insert(len(out)-1, Ins(f"s_nop {need-1}")); added += 1
    return out[n0:], added

def check_hazards(trace):
    bad = []
    for i in range(len(trace)):
        need, why = hazard_need(trace, i)
        if need > 0: bad.append((i, need, why))
    return bad

def check_counters(trace):
    bad = []
    lg, vm = [], []
    for i, c in enumerate(trace):
        if c.kind == 'x': continue
        if c.mn == 's_waitcnt':
            t = c.text
            m = re.search(r'lgkmcnt\((\d+)\)', t)
            if m:
                n = int(m.group(1))
                if any(x[2] for x in lg) and n != 0: pass
                else:
                    while len(lg) > n: lg.pop(0)
            m = re.search(r'vmcnt\((\d+)\)', t)
            if m:
                n = int(m.group(1))
                while len(vm) > n: vm.pop(0)
            continue
        touched = set(c.rd) | set(c.wr)
        for q, nm in ((lg, 'lgkm'), (vm, 'vm')):
            for d, txt, _ in q:
                if d & touched:
                    if nm == 'lgkm' and c.kind == 'l' and not (d & set(c.rd)): continue
                    if nm == 'vm' and c.kind == 'g' and not (d & set(c.rd)): continue
                    bad.append((i, nm, f"{txt}  pending at  {c.text}"))
        if c.kind == 'l': lg.append((set(c.wr), c.text, False))
        elif c.mn.startswith(('s_load', 's_memtime', 's_memrealtime')): lg.append((set(c.wr), c.text, True))
        elif c.kind == 'g' and not c.mn.startswith(('buffer_wbl2x',)): vm.append((set(c.wr), c.text, False))
        if len(vm) > 63: bad.append((i, 'vm', 'more than 63 outstanding at ' + c.text))
    return bad
```

```python
from asmlib import *
MF = "v_mfma_f32_16x16x32_bf16"
def vr(b, n=4): return f"v[{b}:{b+n-1}]"
def ar(b, n=4): return f"a[{b}:{b+n-1}]"
def sr(b, n=4): return f"s[{b}:{b+n-1}]"

def gen_k2(Prog, cfg, K2):
    p = Prog()
    sO, sW, sOut = 4, 8, 12
    sWv, sM, sOo, sWo, sCnt, sT, sT2, sT3 = 24, 25, 26, 27, 28, 29, 30, 31
    sST = 64
    vO0, vW0, vR0 = 2, 10, 14
    WF = 32
    ACC = 128
    D = 5
    oflags = getattr(cfg, 'k2_o_flags', ''); wflags = getattr(cfg, 'k2_w_flags', '')
    p.out.append(Ins(".p2align 8")); p.label(K2)
    L = f"""s_cmp_ge_u32 s2, 256
s_cbranch_scc1 K2_END
s_getpc_b64 s[36:37]
K2_PC:
s_mov_b32 s38, (CODE_END - K2_PC)
s_mov_b32 s39, 0x20000
v_lshlrev_b32 v1, 7, v0
buffer_load_dword v31, v1, s[36:39], 0 offen
s_bfe_u32 s3, s2, 0x10002
s_mul_i32 s{sT}, s3, 40
s_add_u32 s{sT}, s{sT}, 32
s_load_dwordx2 s[16:17], s[0:1], s{sT}
s_load_dwordx2 s[18:19], s[0:1], 80
s_load_dwordx2 s[20:21], s[0:1], 96""".split('\n')
    p.raw(L)
    if cfg.stamps: p.raw([f"s_memrealtime {sr(sST,2)}", f"s_memtime {sr(sST+2,2)}"])
    L = f"""v_lshrrev_b32 v18, 6, v0
v_and_b32 v19, 63, v0
v_readfirstlane_b32 s{sWv}, v18
v_lshlrev_b32 v1, 4, v19
s_and_b32 s{sT}, s2, 3
s_lshl_b32 s{sT}, s{sT}, 1
s_lshr_b32 s{sT2}, s2, 7
s_add_u32 s{sT}, s{sT}, s{sT2}
s_bfe_u32 s{sT2}, s2, 0x10006
s_bfe_u32 s{sT3}, s2, 0x30003
s_lshl_b32 s{sM}, s{sWv}, 15
v_lshl_add_u32 v20, v18, 19, v1
s_lshl_b32 s32, s{sT2}, 15
v_add_u32 v20, s32, v20
v_lshlrev_b32 v21, 1, v18""".split('\n')
    for q in range(8):
        L += [f"v_add_u32 v22, {q}, v21", "v_and_b32 v22, 7, v22", f"v_lshl_add_u32 v{vO0+q}, v22, 12, v20"]
    L += f"""v_lshrrev_b32 v22, 3, v19
v_bfe_u32 v23, v19, 4, 2
v_lshlrev_b32 v23, 1, v23
v_and_b32 v24, 7, v19
v_xor_b32 v23, v23, v24
v_lshlrev_b32 v23, 4, v23
v_lshl_add_u32 v23, v22, 10, v23
v_lshl_add_u32 v{vW0}, v18, 20, v23
v_add_u32 v{vW0+1}, 7168, v{vW0}
v_add_u32 v{vW0+2}, {2*7168}, v{vW0}
v_add_u32 v{vW0+3}, {3*7168}, v{vW0}
v_bfe_u32 v22, v19, 2, 3
v_lshrrev_b32 v23, 1, v22
v_lshlrev_b32 v24, 7, v22
v_lshrrev_b32 v25, 5, v19
v_lshl_add_u32 v24, v25, 10, v24
v_and_b32 v25, 3, v19
v_lshl_add_u32 v24, v25, 3, v24
v_lshl_add_u32 v24, v18, 15, v24""".split('\n')
    for nb in range(4):
        L += [f"v_xor_b32 v25, {nb}, v23", f"v_lshl_add_u32 v{vR0+nb}, v25, 5, v24"]
    L += f"""s_waitcnt lgkmcnt(0)
s_lshl_b32 s32, s3, 3
s_add_u32 s32, s32, s{sT}
s_lshl_b32 s32, s32, 21
s_add_u32 s{sO}, s20, s32
s_addc_u32 s{sO+1}, s21, 0
s_mov_b32 s{sO+2}, 0x200000
s_mov_b32 s{sO+3}, 0x20000
s_lshl_b32 s32, s{sT3}, 7
s_add_u32 s{sW}, s16, s32
s_addc_u32 s{sW+1}, s17, 0
s_sub_u32 s{sW+2}, 0x400000, s32
s_mov_b32 s{sW+3}, 0x20000
s_lshl_b32 s33, s{sT}, 19
s_add_u32 s32, s32, s33
s_lshl_b32 s33, s3, 10
s_add_u32 s32, s32, s33
s_add_u32 s{sOut}, s18, s32
s_addc_u32 s{sOut+1}, s19, 0
s_sub_u32 s{sOut+2}, 0x400000, s32
s_mov_b32 s{sOut+3}, 0x20000
s_mov_b32 s{sOo}, 0
s_mov_b32 s{sWo}, 0""".split('\n')
    p.raw(L)
    def issue(k):
        r = []
        slot = k & 7
        for i in range(4):
            pre = [f"s_add_u32 m0, s{sM}, {slot*4096}"] if i == 0 else []
            r.append((pre, f"buffer_load_dwordx4 v{vW0+i}, {sr(sW)}, s{sWo} offen offset:{i*1024} {wflags} lds"))
        for q in range(8):
            pre = [f"s_add_u32 s{sWo}, s{sWo}, 32768"] if q == 0 else []
            r.append((pre, f"buffer_load_dwordx4 {ar(32*slot+4*q)}, v{vO0+q}, {sr(sO)}, s{sOo} offen offset:{(k&3)*1024} {oflags}"))
        post = [f"s_add_u32 s{sOo}, s{sOo}, 65536"] if (k & 3) == 3 else []
        return r, post
    def wreads(k):
        return [f"ds_read_b64_tr_b16 {vr(WF+16*(k&1)+4*nb+2*u, 2)}, v{vR0+nb} offset:{(k&7)*4096+u*2048}" for nb in range(4) for u in range(2)]
    L = []
    for k in range(D):
        r, post = issue(k)
        for pre, d in r: L += pre + (["s_nop 0"] if pre and 'm0' in pre[0] else []) + [d]
        L += post
    L += [f"s_waitcnt vmcnt({12*(D-1)+8})"] + wreads(0)
    p.raw(L)
    def step(k, first, last_issue, ctl=None):
        mf = []
        for nb in range(4):
            for q in range(8):
                c = vr(ACC+4*(nb*8+q))
                mf.append(f"{MF} {c}, {vr(WF+16*(k&1)+4*nb)}, {ar(32*(k&7)+4*q)}, {'0' if first else c}")
        hi = min(k+D-1, last_issue)
        n = 12*(hi - (k+1)) + 8 if k+1 <= last_issue else 0
        g = [dict(m=None, s=[f"s_waitcnt vmcnt({n})"], v=[])] + [dict(m=m, s=[], v=[]) for m in mf]
        if k+1 <= last_issue:
            for i, r in enumerate(wreads(k+1)): g[2+2*i]['v'].append(r)
        if k+D <= last_issue:
            r, post = issue(k+D)
            for i, (pre, d) in enumerate(r):
                g[2+2*i]['s'] += pre; g[3+2*i]['v'].append(d)
            g[28]['s'] += post
        if ctl:
            g[-2]['s'].append(ctl[0]); g[-1]['s'].append(ctl[1]); g[-1]['v'].append(ctl[2])
        p.gaps(g)
    for k in range(8): step(k, k == 0, 99)
    p.raw([f"s_mov_b32 s{sCnt}, 2"])
    p.label("K2_LOOP")
    for rep in range(2):
        n0 = len(p.out)
        for k in range(8, 16): step(k, False, 99, (f"s_sub_u32 s{sCnt}, s{sCnt}, 1", f"s_cmp_lg_u32 s{sCnt}, 0", "s_cbranch_scc1 K2_LOOP") if k == 15 else None)
        if rep == 0: first = [x.text for x in p.out[n0:]]
        else:
            assert first == [x.text for x in p.out[n0:]]; del p.out[n0:]
    for k in range(24, 32): step(k, False, 31)
    if cfg.stamps: p.raw([f"s_memrealtime {sr(sST+4,2)}", f"s_memtime {sr(sST+6,2)}", "s_waitcnt lgkmcnt(0)"])
    L = ["s_barrier"]
    for d in range(1, 4):
        L += [f"s_add_u32 s{sT}, s{sWv}, {d}", f"s_and_b32 s{sT}, s{sT}, 3", f"s_mul_i32 s{sT}, s{sT}, 24576", f"s_add_u32 s{sT}, s{sT}, {(d-1)*8192}", f"v_add_u32 v20, s{sT}, v1"]
        for nb in range(4):
            for h in range(2):
                L.append(f"ds_write_b128 v20, {vr(ACC+4*(nb*8+2*d+h))} offset:{(nb*2+h)*1024}")
    L += [f"s_mul_i32 s{sT}, s{sWv}, 24576", f"v_add_u32 v20, s{sT}, v1",
          f"s_lshl_b32 s{sT2}, s{sT2}, 7", f"s_lshl_b32 s{sT}, s{sWv}, 5", f"s_add_u32 s{sT}, s{sT}, s{sT2}", f"v_and_b32 v21, 15, v19", f"v_add_u32 v21, s{sT}, v21",
          f"v_lshlrev_b32 v21, 11, v21", f"v_lshrrev_b32 v22, 4, v19", f"v_lshl_add_u32 v21, v22, 3, v21", f"v_add_u32 v22, 32768, v21",
          "s_waitcnt lgkmcnt(0)", "s_barrier"]
    for sl in range(3):
        for t in range(8): L.append(f"ds_read_b128 {vr(32+32*sl+4*t)}, v20 offset:{sl*8192+t*1024}")
    for nb in range(4):
        for h in range(2):
            c = ACC+4*(nb*8+h); t = nb*2+h
            for sl in range(3):
                for r in (0, 2): L.append(f"v_pk_add_f32 {vr(c+r,2)}, {vr(c+r,2)}, {vr(32+32*sl+4*t+r,2)}")
            L += [f"v_cvt_pk_bf16_f32 v{c}, v{c}, v{c+1}", f"v_cvt_pk_bf16_f32 v{c+1}, v{c+2}, v{c+3}",
                  f"buffer_store_dwordx2 {vr(c,2)}, v{21+h}, {sr(sOut)}, 0 offen offset:{nb*32}"]
    p.raw(L)
    if cfg.stamps:
        L = [f"s_waitcnt vmcnt(0)", f"s_memrealtime {sr(sST+8,2)}", f"s_memtime {sr(sST+10,2)}", "s_waitcnt lgkmcnt(0)",
             f"s_lshl_b32 s{sT}, s2, 7", f"s_add_u32 s{sT}, s{sT}, 0x4010000", f"s_add_u32 s96, s20, s{sT}", f"s_addc_u32 s97, s21, 0", "v_mov_b32 v20, 0"]
        for i in range(3):
            L += [f"v_mov_b32 v{16+r}, s{sST+4*i+r}" for r in range(4)]
            L += [f"global_store_dwordx4 v20, v[16:19], s[96:97] offset:{16*i}", "s_nop 1"]
        p.raw(L)
    p.label("K2_END"); p.raw(["s_endpgm"])
    bad = check_hazards(p.trace); assert not bad, bad[:5]
    bad = check_counters(p.trace); assert not bad, bad[:5]
    return p, 131072
```

```python
import sys, math, re
from asmlib import *

NAME = "concat_heads__mha_block_cached__gqa_block_cached__near_ridge"
K1 = "attn_kernel"
K2 = "oproj_kernel"

class Cfg:
    kv_flags = "nt"
    xw_flags = ""
    o_st_flags = ""
    stamps = False
cfg = Cfg()

KT = 16896; VBASE = 4*KT
REG = {1: 84480, 2: 33792, 0: 117760}
SCR = 151040; SCRW = 3200; FLAG = 163836
LDS1 = 163840
CSCALE = math.log2(math.e) / math.sqrt(128.0)
import struct
f2u = lambda f: struct.unpack('<I', struct.pack('<f', f))[0]
LBOUND = f2u(2.0**24)

sX, sW, sK, sV, sO = 4, 8, 12, 16, 20
sPTR = 24
sWS = 32
sCODE = 36
sWv, sXm, sWm, sKVm, sKk, sXo, sWo = 40, 41, 42, 43, 44, 45, 46
sCur, sNxt, sMk, sSoff, sCnt, sOo = 47, 48, 49, 50, 51, 52
sC = 54
sBad = 56
sBound = 60
sT = 61; sT2 = 62; sT3 = 63
sST = 64
vKV = 1
vX0, vW0, vXl, vWl, vXr, vWr = 2, 6, 10, 11, 12, 13
vKl, vVl, vK, vV, vOo = 2, 3, 4, 5, 6
vM, vM2, vR = 7, 8, 9
ONES, L0, NEGM, P0, S0, TMP, O0 = 16, 20, 36, 52, 68, 100, 128
aK, aV, aQ = 0, 64, (128, 192)
aXb = (0, 16); aAcc = 32

def vr(b, n=4): return f"v[{b}:{b+n-1}]"
def ar(b, n=4): return f"a[{b}:{b+n-1}]"
def sr(b, n=4): return f"s[{b}:{b+n-1}]"
MF = "v_mfma_f32_16x16x32_bf16"

class Prog:
    def __init__(self):
        self.out = []
        self.trace = []
        self.pend = []
        self.nops = 0
    def raw(self, lines):
        seg = [Ins(l) for l in (lines if isinstance(lines, list) else lines.split('\n')) if l.strip()]
        seg = self.autowait(seg, None)
        self.commit(seg)
    def commit(self, seg, fix=True):
        if fix:
            seg, n = fix_hazards(seg, self.trace[-30:]); self.nops += n
        self.out += seg; self.trace += seg
        return seg
    def autowait(self, seg, slots):
        issued = []
        issued = [[-1, d] for d in self.pend]
        inserts = {}
        lastslot = None
        for i, c in enumerate(seg):
            if slots is not None and i in slots: lastslot_new = i
            else: lastslot_new = None
            if c.mn == 's_waitcnt':
                m = re.search(r'lgkmcnt\((\d+)\)', c.text)
                if m:
                    n = int(m.group(1))
                    while len(issued) > n: issued.pop(0)
            else:
                touched = set(c.rd) | (set(c.wr) if c.kind != 'l' else set())
                k = max((q for q, (idx, d) in enumerate(issued) if d & touched), default=None)
                if k is not None:
                    pos = i
                    if lastslot is not None and issued[k][0] < lastslot and c.kind == 'm': pos = lastslot
                    n = sum(1 for q in range(k+1, len(issued)) if issued[q][0] < pos)
                    n = min(n, 15)
                    inserts[pos] = min(inserts.get(pos, 99), n)
                    before = [q for q in range(len(issued)) if issued[q][0] < pos]
                    drop = len(before) - n
                    issued = issued[drop:]
                if c.kind == 'l': issued.append([i, set(c.wr)])
            if lastslot_new is not None: lastslot = lastslot_new
        self.pend = [d for _, d in issued]
        out = []
        for i, c in enumerate(seg):
            if i in inserts: out.append(Ins(f"s_waitcnt lgkmcnt({inserts[i]})"))
            out.append(c)
        return out
    def gaps(self, gaps, fix=True):
        seg = []; slots = set()
        for g in gaps:
            if g.get('m'): seg.append(Ins(g['m']))
            slots.add(len(seg))
            seg += [Ins(x) for x in g['s']] + [Ins(x) for x in g['v']]
        seg = self.autowait(seg, slots)
        return self.commit(seg, fix)
    def label(self, l): self.out.append(Ins(l + ":"))

def newgaps(mf): return [dict(m=m, s=[], v=[]) for m in mf]
def iskind(t): return Ins(t).kind
def place_valu(gaps, stream, start=0):
    cost = lambda t: 2 if iskind(t) == 'e' else 1
    fixed = [len(g['v']) for g in gaps]
    C = 2
    while True:
        plan = [[] for _ in gaps]; i = 0
        for gi in range(start, len(gaps)):
            cap = C - fixed[gi]
            if C > 2: cap = max(cap, 1)
            while i < len(stream) and cost(stream[i]) <= cap and not (C == 2 and cost(stream[i]) == 2 and fixed[gi] > 0):
                plan[gi].append(stream[i]); cap -= cost(stream[i]); i += 1
        if i == len(stream): break
        C += 1
    for g, p in zip(gaps, plan): g['v'] += p
    return C

def qacc(f, qb):
    t = None
    if f >= 12 and qb == 3: return 'a', aAcc + 4*(f-12)
    idx = f*4 + qb
    skip = sum(1 for ff in range(12, 16) if ff*4+3 < idx)
    return 'v', 16 + 4*(idx - skip)
def qacc_r(f, qb):
    t, b = qacc(f, qb); return f"{t}[{b}:{b+3}]"

def x_dma(i): return f"buffer_load_dwordx4 v{vX0+i}, {sr(sX)}, s{sXo} offen offset:{i*1024} {cfg.xw_flags} lds"
def w_dma(i): return f"buffer_load_dwordx4 v{vW0+i}, {sr(sW)}, s{sWo} offen offset:{i*1056} {cfg.xw_flags} lds"
def kv_dma(srd, i, soff): return f"buffer_load_dwordx4 v{vKV}, {sr(srd)}, s{soff} offen offset:{i*1024} {cfg.kv_flags} lds"
def stage_adv():
    return [f"s_add_u32 s{sKk}, s{sKk}, 1", f"s_and_b32 s{sKk}, s{sKk}, 15", f"s_lshl_b32 s{sXo}, s{sKk}, 6", f"s_lshl_b32 s{sWo}, s{sKk}, 18"]
def stage_dma_list(t):
    L = []
    for i in range(4): L.append((f"s_add_u32 m0, s{sXm}, {REG[t%3]}" if i == 0 else None, x_dma(i)))
    for i in range(4): L.append((f"s_add_u32 m0, s{sWm}, {REG[t%3]}" if i == 0 else None, w_dma(i)))
    return L
def kv_static_list(isV, tile):
    L = []
    base = (VBASE if isV else 0) + (tile % 4)*KT
    for i in range(4):
        pre = [f"s_add_u32 m0, s{sKVm}, {base + i*32}"]
        if i == 0: pre = [f"s_add_u32 s{sT}, s{sSoff}, {tile*16384}"] + pre
        L.append((pre, kv_dma(sV if isV else sK, i, sT)))
    return L
def xread(t, qb): return f"ds_read_b128 {ar(aXb[t&1]+4*qb)}, v{vXr} offset:{qb*1024}"
def wread(f, u): return f"ds_read_b64_tr_b16 {ar(aV+4*f+2*u, 2)}, v{vWr} offset:{(f>>3)*8448 + u*256 + (f&7)*32}"
WPOS = [37 + int(i*1.6) for i in range(32)]

def q_step(p, t):
    mf = []
    for f in range(16):
        for qb in range(4):
            c = qacc_r(f, qb)
            mf.append(f"{MF} {c}, {ar(aV+4*f)}, {ar(aXb[t&1]+4*qb)}, {'0' if t == 0 else c}")
    g = newgaps(mf)
    for i, pos in enumerate(WPOS):
        if pos >= 64: g[pos-64]['v'].append(wread(i//2, i & 1))
    nvm = {0: 20, 1: 20, 13: 8, 14: 4}.get(t, 8)
    g[31]['s'].append(f"s_waitcnt vmcnt({nvm}) lgkmcnt(0)" if t < 15 else "s_waitcnt lgkmcnt(0)")
    g[32]['s'].append("s_barrier")
    if t < 15:
        g[32]['v'] += [f"v_add_u32 v{vXr}, {REG[(t+1)%3]}, v{vXl}", f"v_add_u32 v{vWr}, {REG[(t+1)%3]}, v{vWl}"]
        for qb in range(4): g[33+qb]['v'].append(xread(t+1, qb))
        for i, pos in enumerate(WPOS):
            if pos < 64: g[pos]['v'].append(wread(i//2, i & 1))
    if t + 3 <= 15:
        for k, s in enumerate(stage_adv()): g[26+k]['s'].append(s)
        dl = [([a] if a else [], b) for a, b in stage_dma_list(t+3)]
    elif t == 13: dl = kv_static_list(True, 1)
    elif t == 14: dl = kv_static_list(False, 2)
    else: dl = kv_static_list(True, 2) + kv_static_list(False, 3) + kv_static_list(True, 3)
    pos = 33
    for pre, d in dl:
        g[pos]['s'] += pre
        g[pos+1]['v'].append(d)
        pos += 2
    p.gaps(g)

def q_epilogue(p):
    L = []
    vWa, vRa = 14, 15
    L += [f"v_and_b32 v{vWa}, 15, v0", f"v_mul_u32_u24 v{vWa}, 144, v{vWa}", f"s_mul_i32 s{sT}, s{sWv}, {SCRW}", f"s_add_u32 s{sT}, s{sT}, {SCR}",
          f"v_add_u32 v{vWa}, s{sT}, v{vWa}", f"v_bfe_u32 v12, v0, 4, 2", f"v_lshl_add_u32 v{vRa}, v12, 4, v{vWa}", f"v_lshl_add_u32 v{vWa}, v12, 3, v{vWa}"]
    pieces = [(1, 3, 1)] + [(hh, qb, half) for hh in range(2) for qb in range(4) for half in range(2) if (hh, qb, half) != (1, 3, 1)]
    for n, (hh, qb, half) in enumerate(pieces):
        for d in range(4):
            f = hh*8 + half*4 + d
            t, b = qacc(f, qb)
            if t == 'a':
                nb = 2 + 0
                for r in range(4): L.append(f"v_accvgpr_read_b32 v{2+r}, a{b+r}")
                b = 2
            L += [f"v_pk_mul_f32 {vr(b,2)}, {vr(b,2)}, {sr(sC,2)}", f"v_pk_mul_f32 {vr(b+2,2)}, {vr(b+2,2)}, {sr(sC,2)}",
                  f"v_cvt_pk_bf16_f32 v{b}, v{b}, v{b+1}", f"v_cvt_pk_bf16_f32 v{b+1}, v{b+2}, v{b+3}",
                  f"ds_write_b64 v{vWa}, {vr(b,2)} offset:{d*32}"]
        for s2 in range(2):
            L.append(f"ds_read_b128 {ar(aQ[hh] + 16*qb + 4*(2*half+s2))}, v{vRa} offset:{s2*64}")
        if n == 0:
            L += [f"v_and_b32 v6, 15, v0", f"v_mul_u32_u24 v6, 1056, v6", f"v_lshl_add_u32 v6, v12, 4, v6"]
            for kb in range(4):
                for s in range(4): L.append(f"ds_read_b128 {ar(aK+16*kb+4*s)}, v6 offset:{kb*256+s*64}")
    L += [f"v_mov_b32 v{vKl}, v6",
          f"v_bfe_u32 v7, v0, 2, 4", f"v_mul_u32_u24 v7, 1056, v7", f"v_and_b32 v8, 3, v0", f"v_lshl_add_u32 v7, v8, 3, v7", f"v_add_u32 v{vVl}, {VBASE}, v7",
          f"v_mov_b32 v{vV}, v{vVl}",
          f"s_lshl_b32 s{sT}, s{sWv}, 14", f"v_add_u32 v{vOo}, s{sT}, v{vKV}"]
    for r in range(4): L.append(f"v_mov_b32 v{ONES+r}, 0x3f803f80")
    p.raw(L)

def kread(kb, s): return f"ds_read_b128 {ar(aK+16*kb+4*s)}, v{vK} offset:{kb*256+s*64}"
def vread(db, ks, u): return f"ds_read_b64_tr_b16 {ar(aV+8*db+4*ks+2*u, 2)}, v{vV} offset:{(2*ks+u)*256+db*32}"
VREADS = [vread(db, ks, u) for db in range(8) for ks in range(2) for u in range(2)]
def vslots():
    pos = []; g = 7
    while len(pos) < 32:
        gg = g % 34
        if gg % 2 == 1 or gg >= 32:
            n = 1 if (gg % 4 == 3 and gg < 32) else 2
            pos += [g]*n
        g += 1
    return pos[:32]
VPOS = vslots()
KPOS = [5,7,9,11, 13,15,17,19, 21,23,25,27, 29,31,32,33]

def softmax_stream(j, first):
    Sr = S0 + 16*(j & 1); Pw = P0 + 8*(j & 1); L = []
    if first:
        L.append(f"v_max3_f32 v{vM}, v{Sr}, v{Sr+1}, v{Sr+2}")
        for i in range(3, 15, 2): L.append(f"v_max3_f32 v{vM}, v{vM}, v{Sr+i}, v{Sr+i+1}")
        L.append(f"v_max_f32 v{vM}, v{vM}, v{Sr+15}")
        L += [f"v_mov_b32 v{vM2}, v{vM}", f"v_permlane32_swap_b32 v{vM}, v{vM2}", f"v_max_f32 v{vM}, v{vM}, v{vM2}",
              f"v_mov_b32 v{vM2}, v{vM}", f"v_permlane16_swap_b32 v{vM}, v{vM2}", f"v_max_f32 v{vM}, v{vM}, v{vM2}"]
        for i in range(16): L.append(f"v_sub_f32 v{Sr+i}, v{Sr+i}, v{vM}")
        for r in range(4): L.append(f"v_sub_f32 v{NEGM+4*j+r}, 0, v{vM}")
    for e in range(16):
        L.append(f"v_exp_f32 v{Sr+e}, v{Sr+e}")
        if e % 2 == 1: L.append(f"v_cvt_pk_bf16_f32 v{Pw+e//2}, v{Sr+e-1}, v{Sr+e}")
    return L

def epi_stream(task, qb):
    L = [f"v_rcp_f32 v{vR}, v{L0+4*qb}", f"v_cmp_nle_f32 vcc, v{L0+4*qb}, v{vR+1}", f"s_or_b64 {sr(sBad+2*task,2)}, {sr(sBad+2*task,2)}, vcc",
         f"s_mov_b32 s{sOo}, {task*65536 + qb*4096}"]
    for s in range(4):
        for h in range(2):
            b = O0 + 32*qb + 4*(2*s+h)
            for r in range(4): L.append(f"v_mul_f32 v{b+r}, v{b+r}, v{vR}")
            L += [f"v_cvt_pk_bf16_f32 v{TMP+4*s+2*h}, v{b}, v{b+1}", f"v_cvt_pk_bf16_f32 v{TMP+4*s+2*h+1}, v{b+2}, v{b+3}"]
        L.append(f"buffer_store_dwordx4 {vr(TMP+4*s)}, v{vOo}, {sr(sO)}, s{sOo} offen offset:{s*1024} {cfg.o_st_flags}")
    return L

def att_step(p, j, qk=None, sm=None, pv=None, kreads=False, vreads=None, bar=None, dma=False, epi=None, tailctl=None):
    qkm = []; pvm = []; summ = []
    if qk is not None:
        task, first = qk; q = (j+1) & 3; Sw = S0 + 16*((j+1) & 1)
        for kb in range(4):
            ch = []
            for s in range(4):
                c = vr(Sw+4*kb) if s else ('0' if first else vr(NEGM+4*q))
                ch.append(f"{MF} {vr(Sw+4*kb)}, {ar(aK+16*kb+4*s)}, {ar(aQ[task]+16*q+4*s)}, {c}")
            qkm.append(ch)
    if pv is not None:
        q = (j+3) & 3; Pr = P0 + 8*((j+1) & 1)
        for db in range(8):
            o = vr(O0+32*q+4*db)
            pvm.append([f"{MF} {o}, {ar(aV+8*db+4*ks)}, {vr(Pr+4*ks)}, {'0' if (pv and ks == 0) else o}" for ks in range(2)])
        l = vr(L0+4*q)
        summ = [f"{MF} {l}, {vr(ONES)}, {vr(Pr+4*ks)}, {'0' if (pv and ks == 0) else l}" for ks in range(2)]
    mf = []
    for i in range(4):
        mf += qkm[i] if qkm else [None]*4
        mf += (pvm[2*i] + pvm[2*i+1]) if pvm else [None]*4
    mf += summ if summ else [None]*2
    g = newgaps(mf)
    if vreads == 'head':
        for pos, r in zip(VPOS, VREADS):
            if pos < 34: g[pos]['v'].append(r)
    if vreads == 'tail':
        for pos, r in zip(VPOS, VREADS):
            if pos >= 34: g[pos-34]['v'].append(r)
    if kreads:
        g[0]['s'] += [f"s_add_u32 s{sNxt}, s{sCur}, {KT}"]
        g[1]['s'] += [f"s_cmp_eq_u32 s{sNxt}, {4*KT}", f"s_cselect_b32 s{sNxt}, 0, s{sNxt}"]
        g[1]['v'].append(f"v_add_u32 v{vK}, s{sNxt}, v{vKl}")
        g[3]['s'].append(f"s_waitcnt vmcnt({bar})")
        g[4]['s'].append("s_barrier")
        for pos, (kb, s) in zip(KPOS, [(kb, s) for kb in range(4) for s in range(4)]): g[pos]['v'].append(kread(kb, s))
    if dma:
        g[0]['s'].append(f"s_add_u32 s{sMk}, s{sCur}, s{sKVm}")
        g[1]['v'].append(f"v_add_u32 v{vV}, s{sNxt}, v{vVl}")
        pos = 2
        for isV in range(2):
            for i in range(4):
                g[pos]['s'].append(f"s_add_u32 m0, s{sMk}, {isV*VBASE + i*32}")
                g[pos+1]['v'].append(kv_dma(sV if isV else sK, i, sSoff))
                pos += 2 if (pos % 4 == 0) else 2
        g[19]['s'].append(f"s_add_u32 s{sSoff}, s{sSoff}, 16384")
        g[20]['s'].append(f"s_mov_b32 s{sCur}, s{sNxt}")
    real = []
    for x in g:
        if x['m'] is None and real:
            real[-1]['s'] += x['s']; real[-1]['v'] += x['v']
        elif x['m'] is None:
            real.append(x)
        else: real.append(x)
    stream = (softmax_stream(j, sm) if sm is not None else []) + (epi_stream(*epi) if epi else [])
    C = place_valu(real, stream) if stream else 2
    if tailctl:
        real[-2]['s'].append(tailctl[0]); real[-1]['s'].append(tailctl[1]); real[-1]['v'].append(tailctl[2])
    p.gaps(real)
    return C

def body(p, kind, task, tailctl=None):
    Cs = []
    if kind == 'loop':
        Cs.append(att_step(p, 1, qk=(task, False), sm=False, pv=False, vreads='tail'))
        Cs.append(att_step(p, 2, qk=(task, False), sm=False, pv=False, kreads=True, bar=16))
        Cs.append(att_step(p, 3, qk=(task, False), sm=False, pv=False, dma=True))
        Cs.append(att_step(p, 0, qk=(task, False), sm=False, pv=False, vreads='head', tailctl=tailctl))
    elif kind == 'first':
        e = (lambda q: (0, q)) if task == 1 else (lambda q: None)
        Cs.append(att_step(p, 1, qk=(task, True), sm=True, pv=True, vreads='tail', epi=e(2)))
        Cs.append(att_step(p, 2, qk=(task, True), sm=True, pv=True, kreads=True, bar=16, epi=e(3)))
        Cs.append(att_step(p, 3, qk=(task, False), sm=True, pv=True, dma=True))
        Cs.append(att_step(p, 0, qk=(task, False), sm=False, pv=True, vreads='head'))
    elif kind == 'last':
        Cs.append(att_step(p, 1, qk=(0, False), sm=False, pv=False, vreads='tail'))
        Cs.append(att_step(p, 2, qk=(0, False), sm=False, pv=False, kreads=True, bar=16))
        Cs.append(att_step(p, 3, qk=(1, True), sm=False, pv=False, dma=True, epi=(0, 0)))
        Cs.append(att_step(p, 0, qk=(1, True), sm=True, pv=False, vreads='head', epi=(0, 1)))
    elif kind == 'final':
        Cs.append(att_step(p, 1, qk=(1, False), sm=False, pv=False, vreads='tail'))
        Cs.append(att_step(p, 2, qk=(1, False), sm=False, pv=False, epi=(1, 0)))
        Cs.append(att_step(p, 3, sm=False, pv=False, epi=(1, 1)))
        Cs.append(att_step(p, 0, pv=False, epi=(1, 2)))
        p.raw(epi_stream(1, 3))
    return Cs

def loop(p, label, task, n):
    p.raw([f"s_mov_b32 s{sCnt}, {n}"])
    ctl = (f"s_sub_u32 s{sCnt}, s{sCnt}, 1", f"s_cmp_lg_u32 s{sCnt}, 0", f"s_cbranch_scc1 {label}")
    p.out.append(Ins(".p2align 6")) if False else None
    p.label(label)
    n0 = len(p.out); nops0 = p.nops
    Cs = body(p, 'loop', task, ctl)
    first = [x.text for x in p.out[n0:]]
    n1 = len(p.out)
    body(p, 'loop', task, ctl)
    second = [x.text for x in p.out[n1:]]
    del p.out[n1:]
    assert first == second, "loop body not steady: " + str([(a, b) for a, b in zip(first, second) if a != b][:5])
    assert p.nops == nops0, "hazard nops in steady loop"
    assert Cs == [2, 2, 2, 2], Cs
    return len(first)

def stamp(p, idx):
    if cfg.stamps: p.raw([f"s_memrealtime {sr(sST+4*idx,2)}", f"s_memtime {sr(sST+4*idx+2,2)}"] + (["s_waitcnt lgkmcnt(0)"] if idx else []))

def slow_path(p):
    L = []
    vMo = 10
    A = L.append
    A("SLOW_TASK:")
    A(f"s_waitcnt vmcnt(0) lgkmcnt(0)"); A("s_barrier")
    A(f"s_lshl_b32 s{sSoff}, s{sWv}, 12"); A(f"s_lshl_b32 s{sT}, s{sT3}, 18"); A(f"s_add_u32 s{sSoff}, s{sSoff}, s{sT}")
    for r in range(128): A(f"v_mov_b32 v{O0+r}, 0")
    for r in range(16): A(f"v_mov_b32 v{L0+r}, 0")
    for q in range(4): A(f"v_mov_b32 v{vMo+q}, 0xff800000")
    A(f"v_mov_b32 v{vK}, v{vKl}"); A(f"v_mov_b32 v{vV}, v{vVl}")
    A(f"s_mov_b32 s{sCnt}, 16")
    A("SLOW_LOOP:")
    for isV in range(2):
        for i in range(4):
            A(f"s_add_u32 m0, s{sKVm}, {isV*VBASE + i*32}"); A("s_nop 0"); A(kv_dma(sV if isV else sK, i, sSoff))
    A(f"s_add_u32 s{sSoff}, s{sSoff}, 16384")
    A("s_waitcnt vmcnt(0)"); A("s_barrier")
    for kb in range(4):
        for s in range(4): A(kread(kb, s))
    A("s_waitcnt lgkmcnt(0)")
    for r in VREADS[:16]: A(r)
    A("s_waitcnt lgkmcnt(0)")
    for r in VREADS[16:]: A(r)
    A("s_waitcnt lgkmcnt(0)"); A("s_barrier")
    for q in range(4):
        Sr = S0; Pw = P0
        for kb in range(4):
            for s in range(4):
                A(f"{MF} {vr(Sr+4*kb)}, {ar(aK+16*kb+4*s)}, {ar(aQ[0]+16*q+4*s)}, {vr(Sr+4*kb) if s else '0'}")
        A(f"v_max3_f32 v{vM}, v{Sr}, v{Sr+1}, v{vMo+q}")
        for i in range(2, 16, 2): A(f"v_max3_f32 v{vM}, v{vM}, v{Sr+i}, v{Sr+i+1}")
        L.extend([f"v_mov_b32 v{vM2}, v{vM}", f"v_permlane32_swap_b32 v{vM}, v{vM2}", f"v_max_f32 v{vM}, v{vM}, v{vM2}",
              f"v_mov_b32 v{vM2}, v{vM}", f"v_permlane16_swap_b32 v{vM}, v{vM2}", f"v_max_f32 v{vM}, v{vM}, v{vM2}"])
        A(f"v_sub_f32 v14, v{vMo+q}, v{vM}"); A("v_exp_f32 v14, v14"); A(f"v_mov_b32 v{vMo+q}, v{vM}")
        for i in range(16): A(f"v_sub_f32 v{Sr+i}, v{Sr+i}, v{vM}")
        for i in range(16): A(f"v_exp_f32 v{Sr+i}, v{Sr+i}")
        for i in range(8): A(f"v_cvt_pk_bf16_f32 v{Pw+i}, v{Sr+2*i}, v{Sr+2*i+1}")
        for r in range(32): A(f"v_mul_f32 v{O0+32*q+r}, v{O0+32*q+r}, v14")
        for r in range(4): A(f"v_mul_f32 v{L0+4*q+r}, v{L0+4*q+r}, v14")
        for db in range(8):
            o = vr(O0+32*q+4*db)
            for ks in range(2): A(f"{MF} {o}, {ar(aV+8*db+4*ks)}, {vr(Pw+4*ks)}, {o}")
        for ks in range(2): A(f"{MF} {vr(L0+4*q)}, {vr(ONES)}, {vr(Pw+4*ks)}, {vr(L0+4*q)}")
    A(f"s_sub_u32 s{sCnt}, s{sCnt}, 1"); A(f"s_cmp_lg_u32 s{sCnt}, 0"); A("s_nop 7"); A("s_cbranch_scc1 SLOW_LOOP")
    for q in range(4):
        e = [x for x in epi_stream(0, q) if not x.startswith(('v_cmp', 's_or_b64', 's_mov_b32'))]
        A(f"s_lshl_b32 s{sOo}, s{sT3}, 16"); A(f"s_add_u32 s{sOo}, s{sOo}, {q*4096}")
        L.extend(e)
    p.pend = []
    p.raw(L)

def gen_k1():
    p = Prog()
    p.out.append(Ins(f".p2align 8")); p.label(K1)
    L = f"""s_cmp_ge_u32 s2, 256
s_cbranch_scc1 K1_END
s_getpc_b64 {sr(sCODE,2)}
K1_PC:
s_mov_b32 s{sCODE+2}, (CODE_END - K1_PC)
s_mov_b32 s{sCODE+3}, 0x20000
v_lshlrev_b32 v1, 7, v0
buffer_load_dword v15, v1, {sr(sCODE)}, 0 offen
v_add_u32 v2, 0x8000, v1
buffer_load_dword v14, v2, {sr(sCODE)}, 0 offen
s_bfe_u32 s3, s2, 0x10002
s_mul_i32 s{sT}, s3, 40
s_load_dwordx8 {sr(sPTR,8)}, s[0:1], s{sT}
s_load_dwordx2 {sr(sWS,2)}, s[0:1], 96""".split('\n')
    p.raw(L)
    stamp(p, 0)
    L = f"""v_lshrrev_b32 v2, 6, v0
v_and_b32 v3, 63, v0
v_readfirstlane_b32 s{sWv}, v2
v_lshlrev_b32 v{vKV}, 4, v3
s_lshr_b32 s{sT}, s2, 3
s_and_b32 s{sT2}, s{sT}, 3
s_lshr_b32 s{sT}, s{sT}, 2
s_lshl_b32 s{sKk}, s{sT2}, 2
s_lshl_b32 s{sT3}, s{sT}, 1
s_add_u32 s{sKk}, s{sKk}, s{sT3}
s_and_b32 s{sKk}, s{sKk}, 15
s_bfe_u32 s{sT3}, s2, 0x10001
s_lshl_b32 s{sT3}, s{sT3}, 2
s_add_u32 s{sT2}, s{sT2}, s{sT3}
s_and_b32 s{sT3}, s2, 1
s_lshl_b32 s{sT3}, s{sT3}, 3
s_add_u32 s{sT}, s{sT}, s{sT3}
s_lshl_b32 s{sXm}, s{sWv}, 12
s_mov_b32 s{sSoff}, s{sXm}
s_mul_i32 s{sKVm}, s{sWv}, 4224
s_add_u32 s{sWm}, s{sKVm}, 16384
s_lshl_b32 s{sXo}, s{sKk}, 6
s_lshl_b32 s{sWo}, s{sKk}, 18
v_lshrrev_b32 v4, 2, v3
v_lshrrev_b32 v5, 3, v4
v_lshlrev_b32 v5, 1, v5
v_and_b32 v6, 3, v3
v_xor_b32 v5, v5, v6
v_lshlrev_b32 v5, 4, v5
v_lshl_add_u32 v5, v4, 10, v5
v_lshl_add_u32 v5, v2, 16, v5
v_lshrrev_b32 v7, 4, v3
v_lshrrev_b32 v8, 1, v7
v_lshlrev_b32 v8, 4, v8
v_and_b32 v9, 1, v7
v_lshl_add_u32 v8, v9, 2, v8
v_and_b32 v9, 1, v2
v_lshl_add_u32 v8, v9, 3, v8
v_lshlrev_b32 v8, 13, v8
v_and_b32 v9, 15, v3
v_lshl_add_u32 v8, v9, 4, v8
v_lshrrev_b32 v10, 1, v2
v_lshl_add_u32 v8, v10, 8, v8
v_lshrrev_b32 v10, 3, v9
v_lshlrev_b32 v10, 1, v10
v_xor_b32 v10, v10, v7
v_lshlrev_b32 v10, 4, v10
v_lshl_add_u32 v10, v9, 6, v10
v_lshl_add_u32 v{vXl}, v2, 12, v10
v_and_b32 v11, 1, v7
v_lshlrev_b32 v11, 2, v11
v_lshrrev_b32 v12, 2, v9
v_add_u32 v11, v11, v12
v_mul_u32_u24 v11, 1056, v11
v_lshrrev_b32 v12, 1, v7
v_lshl_add_u32 v11, v12, 9, v11
v_and_b32 v12, 3, v3
v_lshl_add_u32 v11, v12, 3, v11
v_add_u32 v{vWl}, 16384, v11
v_mov_b32 v{vX0}, v5
v_add_u32 v{vX0+1}, {15360}, v5
v_add_u32 v{vX0+2}, {2*15360}, v5
v_add_u32 v{vX0+3}, {3*15360}, v5
v_add_u32 v{vW0+3}, {3*7136}, v8
v_add_u32 v{vW0+1}, {7136}, v8
v_mov_b32 v{vW0}, v8
v_add_u32 v{vW0+2}, {2*7136}, v{vW0}
s_waitcnt lgkmcnt(0)
s_lshl_b32 s{sT3}, s{sT2}, 18
s_add_u32 s{sX}, s{sPTR}, s{sT3}
s_addc_u32 s{sX+1}, s{sPTR+1}, 0
s_mov_b32 s{sX+2}, 0x40000
s_mov_b32 s{sX+3}, 0x20000
s_lshl_b32 s{sT3}, s{sT}, 9
s_add_u32 s{sW}, s{sPTR+6}, s{sT3}
s_addc_u32 s{sW+1}, s{sPTR+7}, 0
s_sub_u32 s{sW+2}, 0x400000, s{sT3}
s_mov_b32 s{sW+3}, 0x20000""".split('\n')
    p.raw(L)
    L = []
    for t in range(3):
        if t: L += stage_adv()
        for m, d in stage_dma_list(t):
            if m: L += [m, "s_nop 0"]
            L.append(d)
    L += f"""s_lshl_b32 s{sT2}, s{sT2}, 5
s_lshl_b32 s{sT}, s{sT}, 1
s_add_u32 s{sT2}, s{sT2}, s{sT}
s_lshl_b32 s{sT3}, s{sT2}, 18
s_add_u32 s{sK}, s{sPTR+2}, s{sT3}
s_addc_u32 s{sK+1}, s{sPTR+3}, 0
s_mov_b32 s{sK+2}, 0x80000
s_mov_b32 s{sK+3}, 0x20000
s_add_u32 s{sV}, s{sPTR+4}, s{sT3}
s_addc_u32 s{sV+1}, s{sPTR+5}, 0
s_mov_b32 s{sV+2}, 0x80000
s_mov_b32 s{sV+3}, 0x20000
s_lshl_b32 s3, s3, 8
s_add_u32 s{sT2}, s{sT2}, s3
s_lshl_b32 s{sT3}, s{sT2}, 16
s_add_u32 s{sO}, s{sWS}, s{sT3}
s_addc_u32 s{sO+1}, s{sWS+1}, 0
s_mov_b32 s{sO+2}, 0x20000
s_mov_b32 s{sO+3}, 0x20000""".split('\n')
    for isV, tile in ((False, 0), (True, 0), (False, 1)):
        for pre, d in kv_static_list(isV, tile): L += pre + ["s_nop 0", d]
    L += [f"s_mov_b32 s{sC}, {f2u(CSCALE):#x}", f"s_mov_b32 s{sC+1}, {f2u(CSCALE):#x}",
          f"s_mov_b64 {sr(sBad,2)}, 0", f"s_mov_b64 {sr(sBad+2,2)}, 0",
          f"v_mov_b32 v12, {FLAG}", f"v_mov_b32 v13, 0", f"ds_write_b32 v12, v13",
          f"v_add_u32 v{vXr}, {REG[0]}, v{vXl}", f"v_add_u32 v{vWr}, {REG[0]}, v{vWl}",
          f"s_waitcnt vmcnt(28) lgkmcnt(0)", "s_barrier"]
    for qb in range(4): L.append(xread(0, qb))
    for i, pos in enumerate(WPOS):
        if pos < 64: L.append(wread(i//2, i & 1))
    p.raw(L)
    stamp(p, 1)
    for t in range(16): q_step(p, t)
    stamp(p, 2)
    q_epilogue(p)
    p.raw([f"v_mov_b32 v{vR+1}, {LBOUND:#x}", f"s_mov_b32 s{sCur}, 0", f"s_add_u32 s{sSoff}, s{sSoff}, {4*16384}"])
    stamp(p, 3)
    att_step(p, 3, qk=(0, True))
    att_step(p, 0, qk=(0, True), sm=True, vreads='head')
    info = {}
    info['first0'] = body(p, 'first', 0)
    info['loopA'] = loop(p, "LOOP_A", 0, 14)
    stamp(p, 4)
    info['last'] = body(p, 'last', 0)
    info['first1'] = body(p, 'first', 1)
    info['loopB'] = loop(p, "LOOP_B", 1, 14)
    stamp(p, 5)
    info['final'] = body(p, 'final', 1)
    stamp(p, 6)
    L = f"""s_cmp_lg_u64 {sr(sBad,2)}, 0
s_cselect_b32 s{sT}, 1, 0
s_cmp_lg_u64 {sr(sBad+2,2)}, 0
s_cselect_b32 s{sT2}, 2, 0
s_or_b32 s{sT}, s{sT}, s{sT2}
v_mov_b32 v12, {FLAG}
v_mov_b32 v13, s{sT}
ds_or_b32 v12, v13
s_waitcnt lgkmcnt(0)
s_barrier
ds_read_b32 v13, v12
s_waitcnt lgkmcnt(0)
v_readfirstlane_b32 s{sT2}, v13""".split('\n')
    p.raw(L)
    if cfg.stamps:
        L = [f"s_waitcnt vmcnt(0)", f"s_memrealtime {sr(sST+28,2)}", f"s_memtime {sr(sST+30,2)}", f"s_load_dwordx2 s[96:97], s[0:1], 88", "s_waitcnt lgkmcnt(0)",
             f"s_lshl_b32 s{sT}, s2, 7", f"s_add_u32 s{sT}, s{sT}, 0x4000000", f"s_add_u32 s96, s{sWS}, s{sT}", f"s_addc_u32 s97, s{sWS+1}, 0", "v_mov_b32 v20, 0"]
        for i in range(8):
            L += [f"v_mov_b32 v{16+r}, s{sST+4*i+r}" for r in range(4)]
            L += [f"global_store_dwordx4 v20, v[16:19], s[96:97] offset:{16*i}", "s_nop 1"]
        p.raw(L)
    p.raw([f"s_cmp_eq_u32 s{sT2}, 0", "s_cbranch_scc1 K1_END"])
    main_trace = list(p.trace)
    p.raw([f"s_bitcmp1_b32 s{sT2}, 0", "s_cbranch_scc1 SLOW_T0", "SLOW_T1:", f"s_mov_b32 s{sT3}, 1", f"s_mov_b32 s{sT2}, 0"] +
          [f"v_accvgpr_mov_b32 a{aQ[0]+r}, a{aQ[1]+r}" for r in range(64)] + ["s_branch SLOW_TASK", "SLOW_T0:", f"s_mov_b32 s{sT3}, 0", f"s_and_b32 s{sT2}, s{sT2}, 2"])
    slow_path(p)
    p.raw([f"s_cmp_lg_u32 s{sT2}, 0", "s_cbranch_scc1 SLOW_T1"])
    p.label("K1_END"); p.raw(["s_endpgm"])
    bad = check_hazards(p.trace); assert not bad, bad[:5]
    bad = check_counters(p.trace); assert not bad, bad[:5]
    return p, info

from gen_k2 import gen_k2

def kd(name, vg, acc, sg=102):
    return f""".amdhsa_kernel {name}
  .amdhsa_next_free_vgpr {vg}
  .amdhsa_next_free_sgpr {sg}
  .amdhsa_accum_offset {acc}
  .amdhsa_group_segment_fixed_size 0
  .amdhsa_kernarg_size 104
  .amdhsa_user_sgpr_count 2
  .amdhsa_user_sgpr_kernarg_segment_ptr 1
  .amdhsa_system_sgpr_workgroup_id_x 1
.end_amdhsa_kernel"""

def generate():
    hdr = [l for l in open("cdna_kernels/" + NAME + ".s.ref").read().split('\n') if l.startswith(';') and '@launch' not in l and 'Override' not in l and 'grid=ceil' not in l]
    hdr = hdr[:15]
    p1, info = gen_k1()
    p2, lds2 = gen_k2(Prog, cfg, K2)
    T = hdr + [f"; @launch kernel={K1} grid=(256,1,1) block=(256,1,1) lds={LDS1}", f"; @launch kernel={K2} grid=(256,1,1) block=(256,1,1) lds={lds2}",
               '.amdgcn_target "amdgcn-amd-amdhsa--gfx950"', ".text",
               f".globl {K1}", f".type {K1},@function", f".globl {K2}", f".type {K2},@function"]
    T += [x.text for x in p1.out] + [x.text for x in p2.out] + ["CODE_END:", '.section .rodata,"a"', ".p2align 6", kd(K1, 512, 256), ".p2align 6", kd(K2, 512, 256)]
    return "\n".join(T) + "\n", info, p1

if __name__ == "__main__":
    out = sys.argv[1] if len(sys.argv) > 1 else "cdna_kernels/" + NAME + ".s"
    for a in sys.argv[2:]:
        k, v = a.split('=', 1)
        setattr(cfg, k, {'True': True, 'False': False}.get(v, v))
    s, info, p1 = generate()
    open(out, "w").write(s)
    print(info, "nops", p1.nops, "lines", s.count('\n'))
```

```python
from asmlib import *
MF = "v_mfma_f32_16x16x32_bf16"
def vr(b, n=4): return f"v[{b}:{b+n-1}]"
def ar(b, n=4): return f"a[{b}:{b+n-1}]"
def sr(b, n=4): return f"s[{b}:{b+n-1}]"

def k2map(cfg, sT, sT2, sT3):
    m = getattr(cfg, 'k2map', 'a')
    if m == 'a':
        return f"""s_and_b32 s{sT}, s2, 3
s_lshl_b32 s{sT}, s{sT}, 1
s_lshr_b32 s{sT2}, s2, 7
s_add_u32 s{sT}, s{sT}, s{sT2}
s_bfe_u32 s{sT2}, s2, 0x10006
s_bfe_u32 s{sT3}, s2, 0x30003"""
    if m == 'b':
        return f"""s_bfe_u32 s{sT}, s2, 0x10001
s_lshl_b32 s{sT}, s{sT}, 2
s_lshr_b32 s{sT2}, s2, 6
s_add_u32 s{sT}, s{sT}, s{sT2}
s_and_b32 s{sT3}, s2, 1
s_lshl_b32 s{sT3}, s{sT3}, 2
s_bfe_u32 s{sT2}, s2, 0x20003
s_add_u32 s{sT3}, s{sT3}, s{sT2}
s_bfe_u32 s{sT2}, s2, 0x10005"""
def gen_k2(Prog, cfg, K2):
    p = Prog()
    sO, sW, sOut = 4, 8, 12
    sWv, sM, sOo, sWo, sCnt, sT, sT2, sT3 = 24, 25, 26, 27, 28, 29, 30, 31
    sST = 64
    vO0, vW0, vR0 = 2, 10, 14
    WF = 32
    ACC = 128
    D = int(getattr(cfg, 'k2D', 5)); TD = int(getattr(cfg, 'k2TD', 2)); tfl = getattr(cfg, 'k2_t_flags', '')
    vTO, vTW = 26, 27; sTO, sTW = 40, 41
    oflags = getattr(cfg, 'k2_o_flags', ''); wflags = getattr(cfg, 'k2_w_flags', '')
    p.out.append(Ins(".p2align 8")); p.label(K2)
    L = f"""s_cmp_ge_u32 s2, 256
s_cbranch_scc1 K2_END
s_getpc_b64 s[36:37]
K2_PC:
s_mov_b32 s38, (CODE_END - K2_PC)
s_mov_b32 s39, 0x20000
v_lshlrev_b32 v1, 7, v0
buffer_load_dword v31, v1, s[36:39], 0 offen
s_bfe_u32 s3, s2, 0x10002
s_mul_i32 s{sT}, s3, 40
s_add_u32 s{sT}, s{sT}, 32
s_load_dwordx2 s[16:17], s[0:1], s{sT}
s_load_dwordx2 s[18:19], s[0:1], 80
s_load_dwordx2 s[20:21], s[0:1], 96""".split('\n')
    p.raw(L)
    if cfg.stamps: p.raw([f"s_memrealtime {sr(sST,2)}", f"s_memtime {sr(sST+2,2)}"])
    L = f"""v_lshrrev_b32 v18, 6, v0
v_and_b32 v19, 63, v0
v_readfirstlane_b32 s{sWv}, v18
v_lshlrev_b32 v1, 4, v19
{k2map(cfg, sT, sT2, sT3)}
s_lshl_b32 s{sM}, s{sWv}, 15
v_lshl_add_u32 v20, v18, 19, v1
s_lshl_b32 s32, s{sT2}, 15
v_add_u32 v20, s32, v20
v_lshlrev_b32 v21, 1, v18""".split('\n')
    for q in range(8):
        L += [f"v_add_u32 v22, {q}, v21", "v_and_b32 v22, 7, v22", f"v_lshl_add_u32 v{vO0+q}, v22, 12, v20"]
    L += f"""v_lshrrev_b32 v22, 3, v19
v_bfe_u32 v23, v19, 4, 2
v_lshlrev_b32 v23, 1, v23
v_and_b32 v24, 7, v19
v_xor_b32 v23, v23, v24
v_lshlrev_b32 v23, 4, v23
v_lshl_add_u32 v23, v22, 10, v23
v_lshl_add_u32 v{vW0}, v18, 20, v23
v_add_u32 v{vW0+1}, 7168, v{vW0}
v_add_u32 v{vW0+2}, {2*7168}, v{vW0}
v_add_u32 v{vW0+3}, {3*7168}, v{vW0}
v_bfe_u32 v22, v19, 2, 3
v_lshrrev_b32 v23, 1, v22
v_lshlrev_b32 v24, 7, v22
v_lshrrev_b32 v25, 5, v19
v_lshl_add_u32 v24, v25, 10, v24
v_and_b32 v25, 3, v19
v_lshl_add_u32 v24, v25, 3, v24
v_lshl_add_u32 v24, v18, 15, v24""".split('\n')
    for nb in range(4):
        L += [f"v_xor_b32 v25, {nb}, v23", f"v_lshl_add_u32 v{vR0+nb}, v25, 5, v24"]
    L += f"""v_cmp_gt_u32 vcc, 32, v19
v_lshlrev_b32 v28, 7, v19
v_lshl_add_u32 v28, v18, 19, v28
s_lshl_b32 s33, s{sT2}, 3
s_add_u32 s33, s33, s{sT3}
s_lshl_b32 s33, s33, 12
v_add_u32 v28, s33, v28
v_mov_b32 v29, 0x40000000
v_cndmask_b32 v{vTO}, v29, v28, vcc
s_and_b32 s33, s{sT}, 1
s_lshl_b32 s33, s33, 1
s_add_u32 s33, s33, s{sT2}
s_lshl_b32 s33, s33, 15
v_lshlrev_b32 v28, 10, v19
v_lshl_add_u32 v28, v18, 20, v28
v_add_u32 v28, s33, v28
v_cndmask_b32 v{vTW}, v29, v28, vcc
s_mov_b32 s{sTO}, 0
s_mov_b32 s{sTW}, 0""".split('\n')
    L += f"""s_waitcnt lgkmcnt(0)
s_lshl_b32 s32, s3, 3
s_add_u32 s32, s32, s{sT}
s_lshl_b32 s32, s32, 21
s_add_u32 s{sO}, s20, s32
s_addc_u32 s{sO+1}, s21, 0
s_mov_b32 s{sO+2}, 0x200000
s_mov_b32 s{sO+3}, 0x20000
s_lshl_b32 s32, s{sT3}, 7
s_add_u32 s{sW}, s16, s32
s_addc_u32 s{sW+1}, s17, 0
s_sub_u32 s{sW+2}, 0x400000, s32
s_mov_b32 s{sW+3}, 0x20000
s_lshl_b32 s33, s{sT}, 19
s_add_u32 s32, s32, s33
s_lshl_b32 s33, s3, 10
s_add_u32 s32, s32, s33
s_add_u32 s{sOut}, s18, s32
s_addc_u32 s{sOut+1}, s19, 0
s_sub_u32 s{sOut+2}, 0x400000, s32
s_mov_b32 s{sOut+3}, 0x20000
{'s_mov_b32 s%d, 0' % (sO+2) if getattr(cfg, 'k2noO', False) else 's_nop 0'}
{'s_mov_b32 s%d, 0' % (sW+2) if getattr(cfg, 'k2noW', False) else 's_nop 0'}
s_mov_b32 s{sOo}, 0
s_mov_b32 s{sWo}, 0""".split('\n')
    p.raw(L)
    def issue(k):
        r = []
        slot = k & 7
        for i in range(4):
            pre = [f"s_add_u32 m0, s{sM}, {slot*4096}"] if i == 0 else []
            r.append((pre, f"buffer_load_dwordx4 v{vW0+i}, {sr(sW)}, s{sWo} offen offset:{i*1024} {wflags} lds ; tag=w{k}"))
        for q in range(8):
            pre = [f"s_add_u32 s{sWo}, s{sWo}, 32768"] if q == 0 else []
            r.append((pre, f"buffer_load_dwordx4 {ar(32*slot+4*q)}, v{vO0+q}, {sr(sO)}, s{sOo} offen offset:{(k&3)*1024} {oflags} ; tag=o{k}"))
        post = [f"s_add_u32 s{sOo}, s{sOo}, 65536"] if (k & 3) == 3 else []
        return r, post
    def wreads(k):
        return [f"ds_read_b64_tr_b16 {vr(WF+16*(k&1)+4*nb+2*u, 2)}, v{vR0+nb} offset:{(k&7)*4096+u*2048}" for nb in range(4) for u in range(2)]
    def touch():
        return [f"buffer_load_dword v30, v{vTO}, {sr(sO)}, s{sTO} offen {tfl}", f"buffer_load_dword v30, v{vTW}, {sr(sW)}, s{sTW} offen {tfl}"], [f"s_add_u32 s{sTO}, s{sTO}, 65536", f"s_add_u32 s{sTW}, s{sTW}, 131072"]
    L = []
    for h in range(TD):
        a, b = touch(); L += a + b
    for k in range(D):
        r, post = issue(k)
        for pre, d in r: L += pre + (["s_nop 0"] if pre and 'm0' in pre[0] else []) + [d]
        L += post
    L += [f"s_waitcnt vmcnt(@w0)"] + wreads(0)
    p.raw(L)
    def step(k, first, last_issue, ctl=None):
        mf = []
        for nb in range(4):
            for q in range(8):
                c = vr(ACC+4*(nb*8+q))
                mf.append(f"{MF} {c}, {vr(WF+16*(k&1)+4*nb)}, {ar(32*(k&7)+4*q)}, {'0' if first else c}")
        n = f"@o{k}+w{k+1}" if k+1 <= last_issue else f"@o{k}"
        g = [dict(m=None, s=[f"s_waitcnt vmcnt({n})"], v=[])] + [dict(m=m, s=[], v=[]) for m in mf]
        if k+1 <= last_issue:
            for i, r in enumerate(wreads(k+1)): g[2+2*i]['v'].append(r)
        if k+D <= last_issue:
            r, post = issue(k+D)
            for i, (pre, d) in enumerate(r):
                g[2+2*i]['s'] += pre; g[3+2*i]['v'].append(d)
            g[28]['s'] += post
        if TD and k % 4 == 0 and k//4 + TD < 8:
            a, b = touch()
            g[27]['v'].append(a[0]); g[29]['v'].append(a[1]); g[30]['s'].append(b[0]); g[31]['s'].append(b[1])
        if ctl:
            g[-2]['s'].append(ctl[0]); g[-1]['s'].append(ctl[1]); g[-1]['v'].append(ctl[2])
        p.gaps(g)
    for k in range(8): step(k, k == 0, 99)
    p.raw([f"s_mov_b32 s{sCnt}, 2"])
    p.label("K2_LOOP")
    for rep in range(2):
        n0 = len(p.out)
        for k in range(8+8*rep, 16+8*rep): step(k, False, 99, (f"s_sub_u32 s{sCnt}, s{sCnt}, 1", f"s_cmp_lg_u32 s{sCnt}, 0", "s_cbranch_scc1 K2_LOOP") if k % 8 == 7 else None)
        if rep == 0: first = [x.text.split(';')[0] for x in p.out[n0:]]
        else:
            sec = [x.text.split(';')[0] for x in p.out[n0:]]
            assert first == sec, [(a, b) for a, b in zip(first, sec) if a != b][:4]
            del p.out[n0:]
    for k in range(24, 32): step(k, False, 31)
    if cfg.stamps: p.raw([f"s_memrealtime {sr(sST+4,2)}", f"s_memtime {sr(sST+6,2)}", "s_waitcnt lgkmcnt(0)"])
    L = ["s_barrier"]
    for d in range(1, 4):
        L += [f"s_add_u32 s{sT}, s{sWv}, {d}", f"s_and_b32 s{sT}, s{sT}, 3", f"s_mul_i32 s{sT}, s{sT}, 24576", f"s_add_u32 s{sT}, s{sT}, {(d-1)*8192}", f"v_add_u32 v20, s{sT}, v1"]
        for nb in range(4):
            for h in range(2):
                L.append(f"ds_write_b128 v20, {vr(ACC+4*(nb*8+2*d+h))} offset:{(nb*2+h)*1024}")
    L += [f"s_mul_i32 s{sT}, s{sWv}, 24576", f"v_add_u32 v20, s{sT}, v1",
          f"s_lshl_b32 s{sT2}, s{sT2}, 7", f"s_lshl_b32 s{sT}, s{sWv}, 5", f"s_add_u32 s{sT}, s{sT}, s{sT2}", f"v_and_b32 v21, 15, v19", f"v_add_u32 v21, s{sT}, v21",
          f"v_lshlrev_b32 v21, 11, v21", f"v_lshrrev_b32 v22, 4, v19", f"v_lshl_add_u32 v21, v22, 3, v21", f"v_add_u32 v22, 32768, v21",
          "s_waitcnt lgkmcnt(0)", "s_barrier"]
    for sl in range(3):
        for t in range(8): L.append(f"ds_read_b128 {vr(32+32*sl+4*t)}, v20 offset:{sl*8192+t*1024}")
    for nb in range(4):
        for h in range(2):
            c = ACC+4*(nb*8+h); t = nb*2+h
            for sl in range(3):
                for r in (0, 2): L.append(f"v_pk_add_f32 {vr(c+r,2)}, {vr(c+r,2)}, {vr(32+32*sl+4*t+r,2)}")
            L += [f"v_cvt_pk_bf16_f32 v{c}, v{c}, v{c+1}", f"v_cvt_pk_bf16_f32 v{c+1}, v{c+2}, v{c+3}",
                  f"buffer_store_dwordx2 {vr(c,2)}, v{21+h}, {sr(sOut)}, 0 offen offset:{nb*32}"]
    p.raw(L)
    if cfg.stamps:
        L = [f"s_waitcnt vmcnt(0)", f"s_memrealtime {sr(sST+8,2)}", f"s_memtime {sr(sST+10,2)}", "s_waitcnt lgkmcnt(0)",
             f"s_lshl_b32 s{sT}, s2, 7", f"s_add_u32 s{sT}, s{sT}, 0x4010000", f"s_add_u32 s96, s20, s{sT}", f"s_addc_u32 s97, s21, 0", "v_mov_b32 v20, 0"]
        for i in range(3):
            L += [f"v_mov_b32 v{16+r}, s{sST+4*i+r}" for r in range(4)]
            L += [f"global_store_dwordx4 v20, v[16:19], s[96:97] offset:{16*i}", "s_nop 1"]
        p.raw(L)
    p.label("K2_END"); p.raw(["s_endpgm"])
    bad = check_hazards(p.trace); assert not bad, bad[:5]
    bad = check_counters(p.trace); assert not bad, bad[:5]
    return p, 131072
```

```python
from asmlib import *
MF = "v_mfma_f32_16x16x32_bf16"
def vr(b, n=4): return f"v[{b}:{b+n-1}]"
def ar(b, n=4): return f"a[{b}:{b+n-1}]"
def sr(b, n=4): return f"s[{b}:{b+n-1}]"

PART_OFF = 0x2000000
FLAG_OFF = 0x2800000
ST = 33792

def gen_k2(Prog, cfg, K2):
    p = Prog()
    sO, sW, sOut, sP, sPp = 4, 8, 12, 44, 48
    sFl = 52
    sWv, sM, sOo, sWo, sCnt, sT, sT2, sT3, sSl, sRd = 24, 25, 26, 27, 28, 29, 30, 31, 34, 35
    sKh = 40
    sST = 64
    vL16, vO, vO2, vW, vW2, vRl, vR = 1, 2, 3, 4, 5, 6, 7
    WF = 32
    NWB = 4
    ACC = 128
    NS = int(getattr(cfg, 'zNS', 4))
    D = NS - 1
    oflags = getattr(cfg, 'k2_o_flags', ''); wflags = getattr(cfg, 'k2_w_flags', '')
    p.out.append(Ins(".p2align 8")); p.label(K2)
    L = f"""s_cmp_ge_u32 s2, 256
s_cbranch_scc1 K2_END
s_bfe_u32 s3, s2, 0x10002
s_mul_i32 s{sT}, s3, 40
s_add_u32 s{sT}, s{sT}, 32
s_load_dwordx2 s[16:17], s[0:1], s{sT}
s_load_dwordx2 s[18:19], s[0:1], 80
s_load_dwordx2 s[20:21], s[0:1], 96
s_getpc_b64 s[36:37]
K2_PC:
s_mov_b32 s38, (CODE_END - K2_PC)
s_mov_b32 s39, 0x20000
v_lshlrev_b32 v1, 7, v0
buffer_load_dword v31, v1, s[36:39], 0 offen""".split('\n')
    p.raw(L)
    if cfg.stamps: p.raw([f"s_memrealtime {sr(sST,2)}", f"s_memtime {sr(sST+2,2)}"])
    L = f"""v_lshrrev_b32 v18, 6, v0
v_and_b32 v19, 63, v0
v_readfirstlane_b32 s{sWv}, v18
v_lshlrev_b32 v{vL16}, 4, v19
s_bfe_u32 s{sT}, s2, 0x10001
s_lshl_b32 s{sT}, s{sT}, 2
s_bfe_u32 s{sT2}, s2, 0x20003
s_add_u32 s{sT}, s{sT}, s{sT2}
s_bfe_u32 s{sT2}, s2, 0x10005
s_lshr_b32 s{sT3}, s2, 6
s_and_b32 s{sKh}, s2, 1
s_mul_i32 s{sM}, s{sWv}, 8448
v_lshl_add_u32 v{vO}, v18, 13, v{vL16}
s_lshl_b32 s32, s{sT2}, 15
v_add_u32 v{vO}, s32, v{vO}
v_add_u32 v{vO2}, 4096, v{vO}
v_lshrrev_b32 v20, 5, v19
v_bfe_u32 v21, v19, 4, 1
v_lshlrev_b32 v20, 5, v20
v_lshl_add_u32 v20, v21, 4, v20
v_lshrrev_b32 v21, 1, v18
v_lshl_add_u32 v20, v21, 6, v20
v_and_b32 v21, 1, v18
v_lshl_add_u32 v20, v21, 3, v20
v_and_b32 v21, 15, v19
v_lshlrev_b32 v21, 4, v21
v_lshl_add_u32 v{vW}, v20, 10, v21
v_add_u32 v{vW2}, 4096, v{vW}
v_lshrrev_b32 v20, 2, v19
v_mul_u32_u24 v20, 1056, v20
v_and_b32 v21, 3, v19
v_lshl_add_u32 v{vRl}, v21, 3, v20
s_waitcnt lgkmcnt(0)
s_lshl_b32 s32, s3, 3
s_add_u32 s32, s32, s{sT}
s_lshl_b32 s32, s32, 1
s_add_u32 s32, s32, s{sKh}
s_lshl_b32 s32, s32, 20
s_add_u32 s{sO}, s20, s32
s_addc_u32 s{sO+1}, s21, 0
s_mov_b32 s{sO+2}, 0x100000
s_mov_b32 s{sO+3}, 0x20000
s_lshl_b32 s32, s{sT3}, 8
s_lshl_b32 s33, s{sKh}, 21
s_add_u32 s33, s33, s32
s_add_u32 s{sW}, s16, s33
s_addc_u32 s{sW+1}, s17, 0
s_sub_u32 s{sW+2}, 0x200000, s32
s_mov_b32 s{sW+3}, 0x20000
{'s_mov_b32 s%d, 0' % (sO+2) if getattr(cfg, 'k2noO', False) else ''}
{'s_mov_b32 s%d, 0' % (sW+2) if getattr(cfg, 'k2noW', False) else ''}
s_mov_b32 s{sOo}, 0
s_mov_b32 s{sWo}, 0
s_mov_b32 s{sSl}, s{sM}
s_mov_b32 s{sRd}, 0""".split('\n')
    p.raw(L)
    def issue(k):
        r = []
        for i in range(8):
            r.append(([f"s_add_u32 m0, s{sSl}, {i*1056 - (i&3)*1024}"], f"buffer_load_dwordx4 v{vW if i < 4 else vW2}, {sr(sW)}, s{sWo} offen offset:{(i&3)*1024} {wflags} lds ; tag=w{k}"))
        for i in range(8):
            r.append(([], f"buffer_load_dwordx4 {ar(32*(k%NS)+4*i)}, v{vO if i < 4 else vO2}, {sr(sO)}, s{sOo} offen offset:{(i&3)*1024} {oflags} ; tag=o{k}"))
        post = [f"s_add_u32 s{sOo}, s{sOo}, 65536", f"s_add_u32 s{sWo}, s{sWo}, 131072", f"s_add_u32 s{sSl}, s{sSl}, {ST}" if (k+1) % NS else f"s_mov_b32 s{sSl}, s{sM}"]
        return r, post
    def wreads(nb):
        b = WF + 16*(nb % NWB)
        return [f"ds_read_b64_tr_b16 {vr(b+4*s+2*u, 2)}, v{vR} offset:{(s>>1)*16896 + (2*(s&1)+u)*256 + nb*32}" for s in range(4) for u in range(2)]
    L = []
    for k in range(D):
        r, post = issue(k)
        for pre, d in r: L += pre + (["s_nop 0"] if pre else []) + [d]
        L += post
        if k == 0:
            L += f"""s_lshl_b32 s33, s{sT}, 19
s_lshl_b32 s32, s{sT3}, 8
s_add_u32 s32, s32, s33
s_lshl_b32 s33, s3, 10
s_add_u32 s32, s32, s33
s_lshl_b32 s33, s{sKh}, 7
s_add_u32 s32, s32, s33
s_add_u32 s{sOut}, s18, s32
s_addc_u32 s{sOut+1}, s19, 0
s_sub_u32 s{sOut+2}, 0x400000, s32
s_mov_b32 s{sOut+3}, 0x20000
s_lshl_b32 s32, s2, 15
s_add_u32 s32, s32, {PART_OFF}
s_add_u32 s{sP}, s20, s32
s_addc_u32 s{sP+1}, s21, 0
s_mov_b32 s{sP+2}, 0x8000
s_mov_b32 s{sP+3}, 0x20000
s_xor_b32 s32, s32, 0x8000
s_add_u32 s{sPp}, s20, s32
s_addc_u32 s{sPp+1}, s21, 0
s_mov_b32 s{sPp+2}, 0x8000
s_mov_b32 s{sPp+3}, 0x20000
s_lshl_b32 s32, s2, 7
s_add_u32 s32, s32, {FLAG_OFF}
s_add_u32 s{sFl}, s20, s32
s_addc_u32 s{sFl+1}, s21, 0
s_xor_b32 s32, s32, 0x80
s_add_u32 s{sFl+2}, s20, s32
s_addc_u32 s{sFl+3}, s21, 0""".split('\n')
    L += [f"v_mov_b32 v{vR}, v{vRl}", f"s_waitcnt vmcnt(@w0)", "s_barrier"] + wreads(0) + wreads(1) + wreads(2)
    p.raw(L)
    AHEAD = 3
    def step(k, first, last, ctl=None):
        mf = []
        for nb in range(8):
            for q in range(2):
                c = vr(ACC+4*(nb*2+q))
                for s in range(4):
                    mf.append(f"{MF} {c}, {vr(WF+16*(nb % NWB)+4*s)}, {ar(32*(k%NS)+16*q+4*s)}, {'0' if (first and s == 0) else c}")
        g = [dict(m=None, s=[f"s_waitcnt vmcnt(@o{k})"], v=[])] + [dict(m=m, s=[], v=[]) for m in mf]
        G = lambda i: g[1+i]
        for nb in range(8):
            t = nb + AHEAD
            if t < 8:
                for i, r in enumerate(wreads(t)): G(8*nb+i)['v'].append(r)
            elif k < last:
                for i, r in enumerate(wreads(t-8)): G(8*nb+i)['v'].append(r)
        if k < last:
            G(38)['s'].append(f"s_waitcnt vmcnt(@w{k+1})")
            G(39)['s'].append("s_barrier")
            nxt = ((k+1) % NS) * ST
            G(39)['v'].append(f"v_add_u32 v{vR}, {nxt}, v{vRl}")
        return g, G
    def emit(k, first, last, ctl=None):
        g, G = step(k, first, last)
        kk = k + D
        if kk <= last and k >= 1 or (k == 0 and False):
            pass
        if k + D <= last:
            r, post = issue(k + D)
            wd, od = r[:8], r[8:]
            for i, (pre, d) in enumerate(od): G(1+4*i)['v'].append(d)
            for i, (pre, d) in enumerate(wd):
                G(40+3*i)['s'] += pre; G(41+3*i)['v'].append(d)
            for i, x in enumerate(post): G(63)['s'].append(x) if i else G(34)['s'].append(x)
        if ctl:
            G(61)['s'].append(ctl[0]); g[-1]['s'].append(ctl[1]); g[-1]['v'].append(ctl[2])
        p.gaps(g)
    last = 15
    for k in range(0, NS): emit(k, k == 0, last)
    nloop = (16 - NS - NS) // NS
    if nloop > 0:
        p.raw([f"s_mov_b32 s{sCnt}, {nloop}"])
        p.label("K2_LOOP")
        for rep in range(nloop):
            n0 = len(p.out)
            for k in range(NS + NS*rep, 2*NS + NS*rep): emit(k, False, last, (f"s_sub_u32 s{sCnt}, s{sCnt}, 1", f"s_cmp_lg_u32 s{sCnt}, 0", "s_cbranch_scc1 K2_LOOP") if k % NS == NS-1 else None)
            cur = [x.text.split(';')[0] for x in p.out[n0:]]
            if rep == 0: first = cur
            else:
                assert first == cur, [(a, b) for a, b in zip(first, cur) if a != b][:4]
                del p.out[n0:]
    for k in range(NS + NS*max(nloop, 0), 16): emit(k, False, last)
    if cfg.stamps: p.raw([f"s_memrealtime {sr(sST+4,2)}", f"s_memtime {sr(sST+6,2)}", "s_waitcnt lgkmcnt(0)"])
    L = [f"v_lshl_add_u32 v20, v18, 13, v{vL16}", "v_add_u32 v21, 4096, v20",
         f"s_lshl_b32 s{sT2}, s{sT2}, 7", f"s_lshl_b32 s{sT}, s{sWv}, 5", f"s_add_u32 s{sT}, s{sT}, s{sT2}", f"v_and_b32 v22, 15, v19", f"v_add_u32 v22, s{sT}, v22",
         f"v_lshlrev_b32 v22, 11, v22", f"v_lshrrev_b32 v23, 4, v19", f"v_lshl_add_u32 v22, v23, 3, v22", f"v_add_u32 v23, 32768, v22",
         f"s_cmp_eq_u32 s{sKh}, 0", "s_cbranch_scc1 K2_KH0"]
    for r in range(32): L.append(f"v_swap_b32 v{ACC+r}, v{ACC+32+r}")
    L += ["K2_KH0:", "s_nop 1"]
    for t in range(8): L.append(f"buffer_store_dwordx4 {vr(ACC+32+4*t)}, v{20 + (t>>2)}, {sr(sP)}, 0 offen offset:{(t&3)*1024} {getattr(cfg, 'p_st', 'sc1')}")
    L += ["s_waitcnt vmcnt(0)", "s_barrier",
          f"s_cmp_lg_u32 s{sWv}, 0", "s_cbranch_scc1 K2_WAITED",
          "v_mov_b32 v24, 0", "v_mov_b32 v25, 1", "s_mov_b64 exec, 1",
          f"global_store_dword v24, v25, {sr(sFl,2)} sc1",
          "K2_POLL:",
          f"global_load_dword v26, v24, {sr(sFl+2,2)} sc1", "s_waitcnt vmcnt(0)", "v_readfirstlane_b32 s32, v26", "s_cmp_eq_u32 s32, 1", "s_cbranch_scc1 K2_POLLED",
          "s_sleep 1", "s_branch K2_POLL", "K2_POLLED:", "s_mov_b64 exec, -1", "K2_WAITED:", "s_barrier"]
    for t in range(8): L.append(f"buffer_load_dwordx4 {vr(32+4*t)}, v{20 + (t>>2)}, {sr(sPp)}, 0 offen offset:{(t&3)*1024} {getattr(cfg, 'p_ld', 'sc1')} ; tag=p{t}")
    for t in range(8):
        c = ACC + 4*t; nb = t >> 1; q = t & 1
        L += [f"s_waitcnt vmcnt(@p{t})", f"v_pk_add_f32 {vr(c,2)}, {vr(c,2)}, {vr(32+4*t,2)}", f"v_pk_add_f32 {vr(c+2,2)}, {vr(c+2,2)}, {vr(34+4*t,2)}",
              f"v_cvt_pk_bf16_f32 v{c}, v{c}, v{c+1}", f"v_cvt_pk_bf16_f32 v{c+1}, v{c+2}, v{c+3}",
              f"buffer_store_dwordx2 {vr(c,2)}, v{22+q}, {sr(sOut)}, 0 offen offset:{nb*32} {getattr(cfg, 'out_st', '')}"]
    p.raw(L)
    if cfg.stamps:
        L = [f"s_waitcnt vmcnt(0)", f"s_memrealtime {sr(sST+8,2)}", f"s_memtime {sr(sST+10,2)}", "s_waitcnt lgkmcnt(0)",
             f"s_lshl_b32 s{sT}, s2, 7", f"s_add_u32 s{sT}, s{sT}, 0x4010000", f"s_add_u32 s96, s20, s{sT}", f"s_addc_u32 s97, s21, 0", "v_mov_b32 v20, 0"]
        for i in range(3):
            L += [f"v_mov_b32 v{16+r}, s{sST+4*i+r}" for r in range(4)]
            L += [f"global_store_dwordx4 v20, v[16:19], s[96:97] offset:{16*i}", "s_nop 1"]
        p.raw(L)
    p.label("K2_END"); p.raw(["s_endpgm"])
    bad = check_hazards(p.trace); assert not bad, bad[:5]
    bad = check_counters(p.trace); assert not bad, bad[:5]
    return p, NS*ST
```

```python
import sys, math, re
from asmlib import *

NAME = "concat_heads__mha_block_cached__gqa_block_cached__near_ridge"
K1 = "attn_kernel"
K2 = "oproj_kernel"

class Cfg:
    kv_flags = "nt"
    x_flags = ""
    w_flags = ""
    krot = "2"
    kvsteps = "2,3,4"
    o_st_flags = "sc1"
    o1_st_flags = "sc1"
    stamps = False
cfg = Cfg()

KT = 16896; VBASE = 4*KT
XS0 = 84480
SCR = 150016; SCRW = 2304; FLAG = 163836
LDS1 = 163840
CSCALE = math.log2(math.e) / math.sqrt(128.0)
import struct
f2u = lambda f: struct.unpack('<I', struct.pack('<f', f))[0]
LBOUND = f2u(2.0**24)

sX, sW, sK, sV, sO = 4, 8, 12, 16, 20
sPTR = 24
sWS = 32
sCODE = 36
sWv, sXm, sWm, sKVm, sKk, sXo, sWo = 40, 41, 42, 43, 44, 45, 46
sCur, sNxt, sMk, sSoff, sCnt, sOo = 47, 48, 49, 50, 51, 52
sC = 54
sBad = 56
sBound = 60
sT = 61; sT2 = 62; sT3 = 63
sWoS = 36
sRot = 53; sTc = 34; sW4 = 35
sWs, sWn, sXs, sTog, sKp, sXd, sJ, sK0 = 47, 48, 49, 50, 52, 60, 24, 25
sST = 64
vKV = 1
vXe, vXl0, vW0, vWl, vXr, vWr = 2, 4, 6, 10, 12, 13
vKl, vVl, vK, vV, vOo = 2, 3, 4, 5, 6
vM, vM2, vR = 7, 8, 9
ONES, L0, NEGM, P0, S0, TMP, O0 = 16, 20, 36, 52, 68, 100, 128
aK, aV, aQ = 0, 64, (128, 192)
aXb = (0, 16); aAcc = 32

def vr(b, n=4): return f"v[{b}:{b+n-1}]"
def ar(b, n=4): return f"a[{b}:{b+n-1}]"
def sr(b, n=4): return f"s[{b}:{b+n-1}]"
MF = "v_mfma_f32_16x16x32_bf16"

class Prog:
    def __init__(self):
        self.out = []
        self.trace = []
        self.pend = []
        self.nops = 0
        self.vmtags = []
    def resolve(self, seg):
        out = []
        for c in seg:
            m = re.search(r'vmcnt\(@(\S+?)\)', c.text)
            if m:
                tags = m.group(1).split('+')
                idx = max(i for i, t in enumerate(self.vmtags) if t in tags)
                for t in tags: assert t in self.vmtags, t
                n = min(len(self.vmtags) - 1 - idx, 63)
                c = Ins(c.text.replace(m.group(0), f"vmcnt({n})"))
            if c.kind == 'g':
                m = re.search(r';\s*tag=(\S+)', c.text)
                self.vmtags.append(m.group(1) if m else '-')
            out.append(c)
        return out
    def raw(self, lines):
        seg = [Ins(l) for l in ('\n'.join(lines) if isinstance(lines, list) else lines).split('\n') if l.strip()]
        seg = self.autowait(seg, None)
        self.commit(seg)
    def commit(self, seg, fix=True):
        seg = self.resolve(seg)
        if fix:
            seg, n = fix_hazards(seg, self.trace[-30:]); self.nops += n
        self.out += seg; self.trace += seg
        return seg
    def autowait(self, seg, slots):
        issued = []
        issued = [[-1, d] for d in self.pend]
        inserts = {}
        lastslot = None
        for i, c in enumerate(seg):
            if slots is not None and i in slots: lastslot_new = i
            else: lastslot_new = None
            if c.mn == 's_waitcnt':
                m = re.search(r'lgkmcnt\((\d+)\)', c.text)
                if m:
                    n = int(m.group(1))
                    while len(issued) > n: issued.pop(0)
            else:
                touched = set(c.rd) | (set(c.wr) if c.kind != 'l' else set())
                k = max((q for q, (idx, d) in enumerate(issued) if d & touched), default=None)
                if k is not None:
                    pos = i
                    if lastslot is not None and issued[k][0] < lastslot and c.kind == 'm': pos = lastslot
                    n = sum(1 for q in range(k+1, len(issued)) if issued[q][0] < pos)
                    n = min(n, 15)
                    inserts[pos] = min(inserts.get(pos, 99), n)
                    before = [q for q in range(len(issued)) if issued[q][0] < pos]
                    drop = len(before) - n
                    issued = issued[drop:]
                if c.kind == 'l': issued.append([i, set(c.wr)])
            if lastslot_new is not None: lastslot = lastslot_new
        self.pend = [d for _, d in issued]
        out = []
        for i, c in enumerate(seg):
            if i in inserts: out.append(Ins(f"s_waitcnt lgkmcnt({inserts[i]})"))
            out.append(c)
        return out
    def gaps(self, gaps, fix=True):
        seg = []; slots = set()
        for g in gaps:
            if g.get('m'): seg.append(Ins(g['m']))
            slots.add(len(seg))
            seg += [Ins(x) for x in g['s']] + [Ins(x) for x in g['v']]
        seg = self.autowait(seg, slots)
        return self.commit(seg, fix)
    def label(self, l): self.out.append(Ins(l + ":"))

def newgaps(mf): return [dict(m=m, s=[], v=[]) for m in mf]
def iskind(t): return Ins(t).kind
def place_valu(gaps, stream, start=0):
    cost = lambda t: 2 if iskind(t) == 'e' else 1
    fixed = [len(g['v']) for g in gaps]
    C = 2
    while True:
        plan = [[] for _ in gaps]; i = 0
        for gi in range(start, len(gaps)):
            cap = C - fixed[gi]
            if C > 2: cap = max(cap, 1)
            while i < len(stream) and cost(stream[i]) <= cap and not (C == 2 and cost(stream[i]) == 2 and fixed[gi] > 0):
                plan[gi].append(stream[i]); cap -= cost(stream[i]); i += 1
        if i == len(stream): break
        C += 1
    for g, p in zip(gaps, plan): g['v'] += p
    return C

def qacc(f, qb):
    t = None
    if f >= 12 and qb == 3: return 'a', aAcc + 4*(f-12)
    idx = f*4 + qb
    skip = sum(1 for ff in range(12, 16) if ff*4+3 < idx)
    return 'v', 16 + 4*(idx - skip)
def qacc_r(f, qb):
    t, b = qacc(f, qb); return f"{t}[{b}:{b+3}]"

def kv_dma(srd, i, soff): return f"buffer_load_dwordx4 v{vKV}, {sr(srd)}, s{soff} offen offset:{i*1024} {cfg.kv_flags} lds"
def w_adv(): return [f"s_add_u32 s{sKk}, s{sKk}, 1", f"s_and_b32 s{sKk}, s{sKk}, 15", f"s_lshl_b32 s{sWo}, s{sKk}, 18"]
def x_adv(): return [f"s_add_u32 s{sKp}, s{sKp}, 1", f"s_and_b32 s{sKp}, s{sKp}, 7", f"s_lshl_b32 s{sXo}, s{sKp}, 7"]
def w_dma_list(t, slot):
    m = f"s_add_u32 m0, s{sKVm}, {slot if isinstance(slot, int) else 's%d' % slot[0]}"
    return [([m] if i == 0 else [], f"buffer_load_dwordx4 v{vW0+i}, {sr(sW)}, s{sWo} offen offset:{i*1056} {cfg.w_flags} lds ; tag=w{t}") for i in range(4)]
def x_dma_list(P):
    return [([f"s_add_u32 m0, s{sXd}, {i*1024}", f"s_add_u32 s{sT}, s{sXo}, {i*8192}"], f"buffer_load_dwordx4 v{vXe+(i&1)}, {sr(sX)}, s{sT} offen {cfg.x_flags} lds ; tag=x{P}") for i in range(8)]
def kv_static_list(isV, tile):
    L = []
    base = (VBASE if isV else 0) + (tile % 4)*KT
    for i in range(4):
        pre = [f"s_add_u32 m0, s{sKVm}, {base + i*32}"]
        if i == 0: pre = [f"s_add_u32 s{sT}, s{sRot}, {tile}", f"s_and_b32 s{sT}, s{sT}, 15", f"s_lshl_b32 s{sT}, s{sT}, 14", f"s_add_u32 s{sT}, s{sT}, s{sW4}"] + pre
        L.append((pre, kv_dma(sV if isV else sK, i, sT) + f" ; tag={'V' if isV else 'K'}{tile}"))
    return L
def soff_adv():
    return [f"s_add_u32 s{sTc}, s{sTc}, 1", f"s_add_u32 s{sT}, s{sTc}, s{sRot}", f"s_and_b32 s{sT}, s{sT}, 15", f"s_and_b32 s{sSoff}, s{sTc}, 48",
            f"s_or_b32 s{sSoff}, s{sSoff}, s{sT}", f"s_lshl_b32 s{sSoff}, s{sSoff}, 14", f"s_add_u32 s{sSoff}, s{sSoff}, s{sW4}"]
def xread(t, qb): return f"ds_read_b128 {ar(aXb[t&1]+4*qb)}, v{vXr} offset:{qb*2048}"
def wread(f, u): return f"ds_read_b64_tr_b16 {ar(aV+4*f+2*u, 2)}, v{vWr} offset:{(f>>3)*8448 + u*256 + ((f&7)>>1)*64 + (f&1)*8}"
WPOS = [37 + int(i*1.6) for i in range(32)]

def put_dmas(g, dl, pos, step=2, limit=64):
    last = None
    for pre, d in dl:
        npre = (len(pre) + 1) // 2
        if last is not None: pos = max(last + 1, last + step - npre)
        for k, x in enumerate(pre): g[pos + k//2]['s'].append(x)
        pos += npre
        g[pos]['v'].append(d)
        last = pos
    assert pos < limit, pos
    return pos

def q_step(p, t, ctl=None):
    mf = []
    for f in range(16):
        for qb in range(4):
            c = qacc_r(f, qb)
            mf.append(f"{MF} {c}, {ar(aV+4*f)}, {ar(aXb[t&1]+4*qb)}, {'0' if t == 0 else c}")
    g = newgaps(mf)
    for i, pos in enumerate(WPOS):
        if pos >= 64: g[pos-64]['v'].append(wread(i//2, i & 1))
    P = t >> 1
    if t == 0:
        dl = x_dma_list(1); dl[0] = (x_adv() + [f"s_add_u32 s{sXd}, s{sXm}, {XS0 + 32768}"] + dl[0][0], dl[0][1])
        w2 = w_dma_list(2, 2*KT); w2[0] = (w_adv() + w2[0][0], w2[0][1])
        put_dmas(g, w2 + [(a, b) for a, b in dl], 0, step=2, limit=31)
    elif t & 1 and P + 2 <= 7:
        dl = x_dma_list(P + 2); dl[0] = (x_adv() + [f"s_add_u32 s{sXd}, s{sXm}, s{sXs}"] + dl[0][0], dl[0][1])
        put_dmas(g, dl, 1, step=3, limit=31)
    elif 2 <= t <= 10:
        pre = [f"s_min_u32 s{sT3}, s{sJ}, 3", f"s_add_u32 s{sJ}, s{sJ}, 1", f"s_mul_i32 s{sT2}, s{sT3}, 1056", f"s_lshl_b32 s{sT3}, s{sT3}, 10", f"s_add_u32 s{sT3}, s{sT3}, s{sK0}", f"s_add_u32 s{sT2}, s{sT2}, s{sKVm}"]
        put_dmas(g, [(pre + [f"s_mov_b32 m0, s{sT2}"], kv_dma(sK, 0, sT3) + " ; tag=K0"), ([f"s_add_u32 m0, s{sT2}, {VBASE}"], kv_dma(sV, 0, sT3) + " ; tag=V0")], 2, step=12, limit=31)
    need = f"w{t+1}" + (f"+x{(t+1)>>1}" if t & 1 else "")
    g[31]['s'].append(f"s_waitcnt vmcnt(@{need}) lgkmcnt(0)" if t < 15 else "s_waitcnt lgkmcnt(0)")
    g[32]['s'].append("s_barrier")
    if t < 15:
        g[28]['s'].append(f"s_add_u32 s{sWn}, s{sWs}, {KT}"); g[29]['s'] += [f"s_cmp_eq_u32 s{sWn}, {4*KT}"]; g[30]['s'] += [f"s_cselect_b32 s{sWn}, {KT}, s{sWn}"]
        if t & 1:
            g[27]['s'].append(f"s_xor_b32 s{sTog}, s{sTog}, 32768")
            g[30]['s'].append(f"s_add_u32 s{sXs}, s{sTog}, {XS0}")
        g[32]['v'] += [f"v_add_u32 v{vXr}, s{sXs}, v{vXl0 + ((t+1) & 1)}", f"v_add_u32 v{vWr}, s{sWn}, v{vWl}"]
        for qb in range(4): g[33+qb]['v'].append(xread(t+1, qb))
        for i, pos in enumerate(WPOS):
            if pos < 64: g[pos]['v'].append(wread(i//2, i & 1))
    if t + 3 <= 15:
        dl = w_dma_list(t+3, (sWs,)); dl[0] = (w_adv() + dl[0][0], dl[0][1])
        put_dmas(g, dl, 34, step=6, limit=58)
    elif t == 13: put_dmas(g, kv_static_list(False, 1) + kv_static_list(True, 1), 33, step=3, limit=59)
    elif t == 14: put_dmas(g, kv_static_list(False, 2), 33, step=5)
    else: put_dmas(g, kv_static_list(True, 2), 33, step=5)
    if t < 15: g[58]['s'].append(f"s_mov_b32 s{sWs}, s{sWn}")
    if getattr(cfg, 'tstamp', False) == 'q' and t < 15:
        g[59]['s'].append(f"s_mov_b32 m0, s100"); g[60]['v'].append("v_writelane_b32 v14, s98, m0")
        g[61]['s'].append(f"s_memrealtime s[98:99]"); g[62]['s'].append("s_add_u32 s100, s100, 1")
    if ctl:
        g[-2]['s'].append(ctl[0]); g[-1]['s'].append(ctl[1]); g[-1]['v'].append(ctl[2])
    qs = getattr(cfg, 'qstrip', '')
    for x in g:
        if 'm' in qs: x['m'] = None
        if 'l' in qs: x['v'] = [y for y in x['v'] if iskind(y) != 'l']
    p.gaps(g)

def q_phase(p):
    q_step(p, 0); q_step(p, 1)
    if getattr(cfg, 'qunroll', False):
        for t in range(2, 12): q_step(p, t)
    else:
        p.raw([f"s_mov_b32 s{sCnt}, 5"])
        p.label("LOOP_Q")
        for rep in range(5):
            n0 = len(p.out)
            q_step(p, 2+2*rep)
            q_step(p, 3+2*rep, (f"s_sub_u32 s{sCnt}, s{sCnt}, 1", f"s_cmp_lg_u32 s{sCnt}, 0", "s_cbranch_scc1 LOOP_Q"))
            cur = [x.text.split(';')[0] for x in p.out[n0:]]
            if rep == 0: first = cur
            else:
                assert first == cur, [(a, b) for a, b in zip(first, cur) if a != b][:4]
                del p.out[n0:]
    for t in range(12, 16): q_step(p, t)

def q_epilogue(p):
    L = [f"v_bfe_u32 v12, v0, 4, 2"]
    def pack(bs, dst):
        r = []
        for b in bs: r += [f"v_pk_mul_f32 {vr(b,2)}, {vr(b,2)}, {sr(sC,2)}", f"v_pk_mul_f32 {vr(b+2,2)}, {vr(b+2,2)}, {sr(sC,2)}"]
        for b in bs: r.append(f"v_cvt_pk_bf16_f32 v{b}, v{b}, v{b+1}")
        for b in bs: r.append(f"v_cvt_pk_bf16_f32 v{b+1}, v{b+2}, v{b+3}")
        for d, b in enumerate(bs): r += [f"v_accvgpr_write_b32 a{dst+2*d}, v{b}", f"v_accvgpr_write_b32 a{dst+2*d+1}, v{b+1}"]
        return r
    pieces = [(1, 3, 1)] + [(hh, qb, half) for hh in range(2) for qb in range(4) for half in range(2) if (hh, qb, half) != (1, 3, 1)]
    for n, (hh, qb, half) in enumerate(pieces):
        bs = [qacc(hh*8 + half*4 + d, qb)[1] for d in range(4)]
        dst = aQ[hh] + 16*qb + 8*half
        if n == 0:
            for pair in range(2):
                for d in range(2):
                    for r in range(4): L.append(f"v_accvgpr_read_b32 v{2+4*d+r}, a{bs[2*pair+d]+r}")
                L += pack([2, 6], dst + 4*pair)
            L += [f"v_and_b32 v11, 15, v0", f"v_mul_u32_u24 v11, 1056, v11", f"v_lshl_add_u32 v11, v12, 4, v11"]
            for kb in range(4):
                for s in range(4): L.append(f"ds_read_b128 {ar(aK+16*kb+4*s)}, v11 offset:{kb*256+s*64}")
        else:
            L += pack(bs, dst)
    L += [f"v_mov_b32 v{vKl}, v11",
          f"v_bfe_u32 v7, v0, 2, 4", f"v_mul_u32_u24 v7, 1056, v7", f"v_and_b32 v8, 3, v0", f"v_lshl_add_u32 v7, v8, 3, v7", f"v_add_u32 v{vVl}, {VBASE}, v7",
          f"v_mov_b32 v{vV}, v{vVl}",
          f"s_lshl_b32 s{sT}, s{sWv}, 14", f"v_add_u32 v{vOo}, s{sT}, v{vKV}"]
    for r in range(4): L.append(f"v_mov_b32 v{ONES+r}, 0x3f803f80")
    p.raw(L)

def kread(kb, s): return f"ds_read_b128 {ar(aK+16*kb+4*s)}, v{vK} offset:{kb*256+s*64}"
def vread(db, ks, u): return f"ds_read_b64_tr_b16 {ar(aV+8*db+4*ks+2*u, 2)}, v{vV} offset:{(2*ks+u)*256+db*32}"
VREADS = [vread(db, ks, u) for db in range(8) for ks in range(2) for u in range(2)]
def vslots():
    pos = []; g = 7
    while len(pos) < 32:
        gg = g % 34
        if gg % 2 == 1 or gg >= 32:
            n = 1 if (gg % 4 == 3 and gg < 32) else 2
            pos += [g]*n
        g += 1
    return pos[:32]
VPOS = vslots()
KPOS = [5,7,9,11, 13,15,17,19, 21,23,25,27, 29,31,32,33]

DMAPOS = [(2, 9), (2, 21), (3, 5), (3, 13), (3, 25), (0, 1), (1, 15), (1, 25)]

def softmax_stream(j, first):
    Sr = S0 + 16*(j & 1); Pw = P0 + 8*(j & 1); L = []
    if first:
        L.append(f"v_max3_f32 v{vM}, v{Sr}, v{Sr+1}, v{Sr+2}")
        for i in range(3, 15, 2): L.append(f"v_max3_f32 v{vM}, v{vM}, v{Sr+i}, v{Sr+i+1}")
        L.append(f"v_max_f32 v{vM}, v{vM}, v{Sr+15}")
        L += [f"v_mov_b32 v{vM2}, v{vM}", f"v_permlane32_swap_b32 v{vM}, v{vM2}", f"v_max_f32 v{vM}, v{vM}, v{vM2}",
              f"v_mov_b32 v{vM2}, v{vM}", f"v_permlane16_swap_b32 v{vM}, v{vM2}", f"v_max_f32 v{vM}, v{vM}, v{vM2}"]
        for i in range(16): L.append(f"v_sub_f32 v{Sr+i}, v{Sr+i}, v{vM}")
        for r in range(4): L.append(f"v_sub_f32 v{NEGM+4*j+r}, 0, v{vM}")
    for e in range(16):
        L.append(f"v_exp_f32 v{Sr+e}, v{Sr+e}")
        if e % 2 == 1: L.append(f"v_cvt_pk_bf16_f32 v{Pw+e//2}, v{Sr+e-1}, v{Sr+e}")
    return L

def epi_stream(task, qb):
    L = [f"v_rcp_f32 v{vR}, v{L0+4*qb}", f"v_cmp_nle_f32 vcc, v{L0+4*qb}, v{vR+1}", f"s_or_b64 {sr(sBad+2*task,2)}, {sr(sBad+2*task,2)}, vcc",
         f"s_mov_b32 s{sOo}, {task*65536 + qb*4096}"]
    for s in range(4):
        for h in range(2):
            b = O0 + 32*qb + 4*(2*s+h)
            for r in range(4): L.append(f"v_mul_f32 v{b+r}, v{b+r}, v{vR}")
            L += [f"v_cvt_pk_bf16_f32 v{TMP+4*s+2*h}, v{b}, v{b+1}", f"v_cvt_pk_bf16_f32 v{TMP+4*s+2*h+1}, v{b+2}, v{b+3}"]
        L.append(f"buffer_store_dwordx4 {vr(TMP+4*s)}, v{vOo}, {sr(sO)}, s{sOo} offen offset:{s*1024} {cfg.o_st_flags if task else cfg.o1_st_flags}")
    return L

def att_step(p, j, qk=None, sm=None, pv=None, kreads=False, vreads=None, bar=None, dma=False, epi=None, tailctl=None, extra=()):
    qkm = []; pvm = []; summ = []
    if qk is not None:
        task, first = qk; q = (j+1) & 3; Sw = S0 + 16*((j+1) & 1)
        for kb in range(4):
            ch = []
            for s in range(4):
                c = vr(Sw+4*kb) if s else ('0' if first else vr(NEGM+4*q))
                ch.append(f"{MF} {vr(Sw+4*kb)}, {ar(aK+16*kb+4*s)}, {ar(aQ[task]+16*q+4*s)}, {c}")
            qkm.append(ch)
    if pv is not None:
        q = (j+3) & 3; Pr = P0 + 8*((j+1) & 1)
        for db in range(8):
            o = vr(O0+32*q+4*db)
            pvm.append([f"{MF} {o}, {ar(aV+8*db+4*ks)}, {vr(Pr+4*ks)}, {'0' if (pv and ks == 0) else o}" for ks in range(2)])
        l = vr(L0+4*q)
        summ = [f"{MF} {l}, {vr(ONES)}, {vr(Pr+4*ks)}, {'0' if (pv and ks == 0) else l}" for ks in range(2)]
    mf = []
    for i in range(4):
        mf += qkm[i] if qkm else [None]*4
        mf += (pvm[2*i] + pvm[2*i+1]) if pvm else [None]*4
    mf += summ if summ else [None]*2
    g = newgaps(mf)
    if vreads == 'head':
        for pos, r in zip(VPOS, VREADS):
            if pos < 34: g[pos]['v'].append(r)
    if vreads == 'tail':
        for pos, r in zip(VPOS, VREADS):
            if pos >= 34: g[pos-34]['v'].append(r)
    if kreads:
        g[0]['s'] += [f"s_add_u32 s{sNxt}, s{sCur}, {KT}"]
        g[1]['s'] += [f"s_cmp_eq_u32 s{sNxt}, {4*KT}", f"s_cselect_b32 s{sNxt}, 0, s{sNxt}"]
        g[1]['v'].append(f"v_add_u32 v{vK}, s{sNxt}, v{vKl}")
        g[3]['s'].append(f"s_waitcnt vmcnt({bar})")
        if not getattr(cfg, 'nobar', False): g[4]['s'].append("s_barrier")
        g[6]['s'].append(f"s_add_u32 s{sMk}, s{sCur}, s{sKVm}")
        for pos, (kb, s) in zip(KPOS, [(kb, s) for kb in range(4) for s in range(4)]): g[pos]['v'].append(kread(kb, s))
    if dma:
        if j == 3: g[1]['v'].append(f"v_add_u32 v{vV}, s{sNxt}, v{vVl}")
        for d, (dj, pos) in enumerate(DMAPOS):
            if dj != j: continue
            isV, i = d >> 2, d & 3
            g[pos-1]['s'].append(f"s_add_u32 m0, s{sMk}, {isV*VBASE + i*32}")
            if not getattr(cfg, 'nodma', False): g[pos]['v'].append(kv_dma(sV if isV else sK, i, sSoff))
        lastj, lastpos = DMAPOS[-1]
        if j == lastj:
            upd = [f"s_mov_b32 s{sCur}, s{sNxt}"] + soff_adv()
            for k, x in enumerate(upd): g[lastpos + 1 + (k*(33 - lastpos))//len(upd)]['s'].append(x)
    for pos, pre, d in extra:
        for k, x in enumerate(pre): g[pos - 1 - (len(pre) - 1 - k)//2]['s'].append(x)
        g[pos]['v'].append(d)
    if getattr(cfg, 'tstamp', False) is True and j == 1:
        g[11]['s'].append("s_mov_b32 m0, s100")
        g[12]['v'].append("v_writelane_b32 v116, s98, m0")
        g[13]['s'] += ["s_memrealtime s[98:99]"]
        g[14]['s'] += ["s_add_u32 s100, s100, 1"]
    real = []
    for x in g:
        if x['m'] is None and real:
            real[-1]['s'] += x['s']; real[-1]['v'] += x['v']
        elif x['m'] is None:
            real.append(x)
        else: real.append(x)
    stream = (softmax_stream(j, sm) if sm is not None else []) + (epi_stream(*epi) if epi else [])
    C = place_valu(real, stream) if stream else 2
    if tailctl:
        real[-2]['s'].append(tailctl[0]); real[-1]['s'].append(tailctl[1]); real[-1]['v'].append(tailctl[2])
    strip = getattr(cfg, 'strip', '')
    if strip and tailctl is not None or (strip and getattr(p, 'inloop', False)):
        for x in real:
            if 'm' in strip: x['m'] = None
            if 'v' in strip: x['v'] = [y for y in x['v'] if iskind(y) not in ('e',) and not y.startswith('v_cvt')]
            if 'l' in strip: x['v'] = [y for y in x['v'] if iskind(y) != 'l']
    p.gaps(real, fix=not strip)
    return C

def body(p, kind, task, tailctl=None):
    Cs = []
    if kind == 'loop':
        Cs.append(att_step(p, 1, qk=(task, False), sm=False, pv=False, vreads='tail', dma=True))
        Cs.append(att_step(p, 2, qk=(task, False), sm=False, pv=False, kreads=True, bar=16, dma=True))
        Cs.append(att_step(p, 3, qk=(task, False), sm=False, pv=False, dma=True))
        Cs.append(att_step(p, 0, qk=(task, False), sm=False, pv=False, vreads='head', dma=True, tailctl=tailctl))
    elif kind == 'first':
        e = (lambda q: (0, q)) if task == 1 else (lambda q: None)
        ex = []
        if task == 0: ex = [(13 + 5*i, pre, d) for i, (pre, d) in enumerate(kv_static_list(True, 3))]
        Cs.append(att_step(p, 1, qk=(task, True), sm=True, pv=True, vreads='tail', epi=e(2), dma=(task == 1), extra=ex))
        Cs.append(att_step(p, 2, qk=(task, True), sm=True, pv=True, kreads=True, bar=('@K1+V1' if task == 0 else 28), epi=e(3), dma=True))
        ex = []
        if task == 1 and getattr(cfg, 'wotouch', True):
            ex = [(17, [], f"buffer_load_dword v{vM2+3}, v{vM2+4}, {sr(sWoS)}, 0 offen")]
        Cs.append(att_step(p, 3, qk=(task, False), sm=True, pv=True, dma=True, extra=ex))
        Cs.append(att_step(p, 0, qk=(task, False), sm=False, pv=True, vreads='head', dma=True))
    elif kind == 'last':
        Cs.append(att_step(p, 1, qk=(0, False), sm=False, pv=False, vreads='tail', dma=True))
        Cs.append(att_step(p, 2, qk=(0, False), sm=False, pv=False, kreads=True, bar=16, dma=True))
        Cs.append(att_step(p, 3, qk=(1, True), sm=False, pv=False, dma=True, epi=(0, 0)))
        Cs.append(att_step(p, 0, qk=(1, True), sm=True, pv=False, vreads='head', dma=True, epi=(0, 1)))
    elif kind == 'final':
        Cs.append(att_step(p, 1, qk=(1, False), sm=False, pv=False, vreads='tail'))
        Cs.append(att_step(p, 2, qk=(1, False), sm=False, pv=False, epi=(1, 0)))
        Cs.append(att_step(p, 3, sm=False, pv=False, epi=(1, 1)))
        Cs.append(att_step(p, 0, pv=False, epi=(1, 2)))
        p.raw(epi_stream(1, 3))
    return Cs

def loop(p, label, task, n):
    p.raw([f"s_mov_b32 s{sCnt}, {n}"])
    ctl = (f"s_sub_u32 s{sCnt}, s{sCnt}, 1", f"s_cmp_lg_u32 s{sCnt}, 0", f"s_cbranch_scc1 {label}")
    p.out.append(Ins(".p2align 6")) if False else None
    p.label(label)
    n0 = len(p.out); nops0 = p.nops
    p.inloop = True
    Cs = body(p, 'loop', task, ctl)
    first = [x.text for x in p.out[n0:]]
    n1 = len(p.out)
    body(p, 'loop', task, ctl)
    second = [x.text for x in p.out[n1:]]
    del p.out[n1:]
    p.inloop = False
    assert getattr(cfg, 'strip', '') or first == second, "loop body not steady: " + str([(a, b) for a, b in zip(first, second) if a != b][:5])
    assert p.nops == nops0, "hazard nops in steady loop"
    assert Cs == [2, 2, 2, 2] or getattr(cfg, 'tstamp', False), Cs
    return len(first)

def pst(idx):
    if getattr(cfg, 'pst', False): return f"s_memrealtime {sr(sST+4*idx,2)}\ns_memtime {sr(sST+4*idx+2,2)}"
    return "s_nop 0"
def stamp(p, idx):
    if getattr(cfg, 'pst', False) and 0 < idx < 7: return
    if cfg.stamps:
        keep = list(p.pend)
        p.raw([f"s_memrealtime {sr(sST+4*idx,2)}", f"s_memtime {sr(sST+4*idx+2,2)}"] + (["s_waitcnt lgkmcnt(0)"] if idx else []))
        p.pend = keep

def slow_path(p):
    L = []
    vMo = 10
    A = L.append
    A("SLOW_TASK:")
    A(f"s_waitcnt vmcnt(0) lgkmcnt(0)"); A("s_barrier")
    A(f"s_lshl_b32 s{sSoff}, s{sWv}, 12"); A(f"s_lshl_b32 s{sT}, s{sT3}, 18"); A(f"s_add_u32 s{sSoff}, s{sSoff}, s{sT}")
    for r in range(128): A(f"v_mov_b32 v{O0+r}, 0")
    for r in range(16): A(f"v_mov_b32 v{L0+r}, 0")
    for q in range(4): A(f"v_mov_b32 v{vMo+q}, 0xff800000")
    A(f"v_mov_b32 v{vK}, v{vKl}"); A(f"v_mov_b32 v{vV}, v{vVl}")
    A(f"s_mov_b32 s{sCnt}, 16")
    A("SLOW_LOOP:")
    for isV in range(2):
        for i in range(4):
            A(f"s_add_u32 m0, s{sKVm}, {isV*VBASE + i*32}"); A("s_nop 0"); A(kv_dma(sV if isV else sK, i, sSoff))
    A(f"s_add_u32 s{sSoff}, s{sSoff}, 16384")
    A("s_waitcnt vmcnt(0)"); A("s_barrier")
    for kb in range(4):
        for s in range(4): A(kread(kb, s))
    A("s_waitcnt lgkmcnt(0)")
    for r in VREADS[:16]: A(r)
    A("s_waitcnt lgkmcnt(0)")
    for r in VREADS[16:]: A(r)
    A("s_waitcnt lgkmcnt(0)"); A("s_barrier")
    for q in range(4):
        Sr = S0; Pw = P0
        for kb in range(4):
            for s in range(4):
                A(f"{MF} {vr(Sr+4*kb)}, {ar(aK+16*kb+4*s)}, {ar(aQ[0]+16*q+4*s)}, {vr(Sr+4*kb) if s else '0'}")
        A(f"v_max3_f32 v{vM}, v{Sr}, v{Sr+1}, v{vMo+q}")
        for i in range(2, 16, 2): A(f"v_max3_f32 v{vM}, v{vM}, v{Sr+i}, v{Sr+i+1}")
        L.extend([f"v_mov_b32 v{vM2}, v{vM}", f"v_permlane32_swap_b32 v{vM}, v{vM2}", f"v_max_f32 v{vM}, v{vM}, v{vM2}",
              f"v_mov_b32 v{vM2}, v{vM}", f"v_permlane16_swap_b32 v{vM}, v{vM2}", f"v_max_f32 v{vM}, v{vM}, v{vM2}"])
        A(f"v_sub_f32 v14, v{vMo+q}, v{vM}"); A("v_exp_f32 v14, v14"); A(f"v_mov_b32 v{vMo+q}, v{vM}")
        for i in range(16): A(f"v_sub_f32 v{Sr+i}, v{Sr+i}, v{vM}")
        for i in range(16): A(f"v_exp_f32 v{Sr+i}, v{Sr+i}")
        for i in range(8): A(f"v_cvt_pk_bf16_f32 v{Pw+i}, v{Sr+2*i}, v{Sr+2*i+1}")
        for r in range(32): A(f"v_mul_f32 v{O0+32*q+r}, v{O0+32*q+r}, v14")
        for r in range(4): A(f"v_mul_f32 v{L0+4*q+r}, v{L0+4*q+r}, v14")
        for db in range(8):
            o = vr(O0+32*q+4*db)
            for ks in range(2): A(f"{MF} {o}, {ar(aV+8*db+4*ks)}, {vr(Pw+4*ks)}, {o}")
        for ks in range(2): A(f"{MF} {vr(L0+4*q)}, {vr(ONES)}, {vr(Pw+4*ks)}, {vr(L0+4*q)}")
    A(f"s_sub_u32 s{sCnt}, s{sCnt}, 1"); A(f"s_cmp_lg_u32 s{sCnt}, 0"); A("s_nop 7"); A("s_cbranch_scc1 SLOW_LOOP")
    for q in range(4):
        e = [x for x in epi_stream(0, q) if not x.startswith(('v_cmp', 's_or_b64', 's_mov_b32'))]
        A(f"s_lshl_b32 s{sOo}, s{sT3}, 16"); A(f"s_add_u32 s{sOo}, s{sOo}, {q*4096}")
        L.extend(e)
    p.pend = []
    p.raw(L)

def rotcode():
    r = getattr(cfg, 'rot', '0')
    if r == '0': return f"s_mov_b32 s{sRot}, 0"
    if r == 'id': return f"s_lshr_b32 s{sRot}, s2, 3\ns_lshr_b32 s{sTc}, s2, 7\ns_add_u32 s{sRot}, s{sRot}, s{sTc}"
    if r == 'low': return f"s_mov_b32 s{sRot}, s2"
    if r == 'mix': return f"s_lshr_b32 s{sRot}, s2, 3\ns_lshl_b32 s{sTc}, s2, 1\ns_add_u32 s{sRot}, s{sRot}, s{sTc}"
def tlbwarm():
    m = getattr(cfg, 'tlb', 'n')
    if m == 's':
        return "\n".join([f"s_load_dword s90, {sr(sX,2)}, 0", f"s_load_dword s91, {sr(sW,2)}, s{sWo}", f"s_xor_b32 s{sT}, s{sWo}, 0x200000", f"s_load_dword s92, {sr(sW,2)}, s{sT}",
                          f"s_load_dword s93, {sr(sK,2)}, 0", f"s_load_dword s94, {sr(sV,2)}, 0", f"s_load_dword s95, {sr(sO,2)}, 0"])
    if m == 'v':
        L = []
        for i, r in enumerate((sX, sW, sK, sV, sO)):
            L += [f"v_writelane_b32 v12, s{r}, {i}", f"v_writelane_b32 v13, s{r+1}, {i}"]
        L += [f"s_add_u32 s{sT}, s{sPTR+6}, 0x200000", f"s_addc_u32 s{sT3}, s{sPTR+7}, 0", f"v_writelane_b32 v12, s{sT}, 5", f"v_writelane_b32 v13, s{sT3}, 5",
              "s_mov_b64 exec, 63", "global_load_dword v12, v[12:13], off", "s_mov_b64 exec, -1"]
        return "\n".join(L)
    return ""
def krotcode():
    r = cfg.krot
    if r == '8': return f"s_lshl_b32 s{sKp}, s{sT2}, 1\ns_add_u32 s{sKp}, s{sKp}, s{sT}\ns_and_b32 s{sKp}, s{sKp}, 7"
    if r == '4': return f"s_add_u32 s{sKp}, s{sT2}, s{sT}\ns_lshl_b32 s{sKp}, s{sKp}, 1\ns_and_b32 s{sKp}, s{sKp}, 7"
    if r == '2': return f"s_add_u32 s{sKp}, s{sT2}, s{sT}\ns_lshl_b32 s{sKp}, s{sKp}, 2\ns_and_b32 s{sKp}, s{sKp}, 7"
    if r == '1': return f"s_mov_b32 s{sKp}, 0"
def gen_k1():
    p = Prog()
    p.out.append(Ins(f".p2align 8")); p.label(K1)
    L = f"""s_cmp_ge_u32 s2, 256
s_cbranch_scc1 K1_END
s_getpc_b64 {sr(sCODE,2)}
K1_PC:
s_mov_b32 s{sCODE+2}, (CODE_END - K1_PC)
s_mov_b32 s{sCODE+3}, 0x20000
v_lshlrev_b32 v1, 7, v0
buffer_load_dword v15, v1, {sr(sCODE)}, 0 offen
v_add_u32 v2, 0x8000, v1
buffer_load_dword v14, v2, {sr(sCODE)}, 0 offen
s_bfe_u32 s3, s2, 0x10002
s_mul_i32 s{sT}, s3, 40
s_load_dwordx8 {sr(sPTR,8)}, s[0:1], s{sT}
s_add_u32 s{sT2}, s{sT}, 32
s_load_dwordx2 {sr(sWoS,2)}, s[0:1], s{sT2}
s_load_dwordx2 {sr(sWS,2)}, s[0:1], 96""".split('\n')
    p.raw(L)
    stamp(p, 0)
    L = f"""v_lshrrev_b32 v2, 6, v0
v_and_b32 v3, 63, v0
v_readfirstlane_b32 s{sWv}, v2
v_lshlrev_b32 v{vKV}, 4, v3
s_lshr_b32 s{sT}, s2, 3
s_and_b32 s{sT2}, s{sT}, 3
s_lshr_b32 s{sT}, s{sT}, 2
{krotcode()}
s_bfe_u32 s{sT3}, s2, 0x10001
s_lshl_b32 s{sT3}, s{sT3}, 2
s_add_u32 s{sT2}, s{sT2}, s{sT3}
s_and_b32 s{sT3}, s2, 1
s_lshl_b32 s{sT3}, s{sT3}, 3
s_add_u32 s{sT}, s{sT}, s{sT3}
s_lshl_b32 s{sW4}, s{sWv}, 12
s_lshl_b32 s{sXm}, s{sWv}, 13
{rotcode()}
s_mul_i32 s{sKVm}, s{sWv}, 4224
s_lshl_b32 s{sKk}, s{sKp}, 1
s_lshl_b32 s{sXo}, s{sKp}, 7
s_lshl_b32 s{sWo}, s{sKk}, 18
v_lshrrev_b32 v4, 3, v3
v_lshrrev_b32 v5, 4, v3
v_and_b32 v6, 7, v3
v_xor_b32 v6, v5, v6
v_lshlrev_b32 v6, 4, v6
v_lshl_add_u32 v6, v4, 10, v6
v_lshl_add_u32 v13, v2, 16, v6
v_lshrrev_b32 v8, 1, v5
v_lshlrev_b32 v8, 4, v8
v_and_b32 v9, 1, v5
v_lshl_add_u32 v8, v9, 2, v8
v_and_b32 v9, 1, v2
v_lshl_add_u32 v8, v9, 3, v8
v_lshlrev_b32 v8, 13, v8
v_and_b32 v9, 15, v3
v_lshl_add_u32 v8, v9, 4, v8
v_lshrrev_b32 v10, 1, v2
v_lshl_add_u32 v8, v10, 8, v8
v_lshrrev_b32 v10, 1, v9
v_xor_b32 v10, v10, v5
v_lshlrev_b32 v10, 4, v10
v_lshl_add_u32 v10, v9, 7, v10
v_lshl_add_u32 v4, v2, 13, v10
v_and_b32 v11, 1, v5
v_lshlrev_b32 v11, 2, v11
v_lshrrev_b32 v12, 2, v9
v_add_u32 v11, v11, v12
v_mul_u32_u24 v11, 1056, v11
v_lshrrev_b32 v12, 1, v5
v_lshl_add_u32 v11, v12, 9, v11
v_and_b32 v12, 3, v3
v_lshl_add_u32 v{vWl}, v12, 4, v11
v_xor_b32 v5, 64, v4
v_mov_b32 v2, v13
v_xor_b32 v3, 64, v13
v_add_u32 v{vW0+3}, {3*7136}, v8
v_add_u32 v{vW0+1}, {7136}, v8
v_mov_b32 v{vW0}, v8
v_add_u32 v{vW0+2}, {2*7136}, v{vW0}
{pst(1)}
s_waitcnt lgkmcnt(0)
{pst(2)}
s_lshl_b32 s{sT3}, s{sT2}, 18
s_add_u32 s{sX}, s{sPTR}, s{sT3}
s_addc_u32 s{sX+1}, s{sPTR+1}, 0
s_lshl_b32 s{sT3}, s{sT}, 9
s_add_u32 s{sW}, s{sPTR+6}, s{sT3}
s_addc_u32 s{sW+1}, s{sPTR+7}, 0
s_sub_u32 s{sW+2}, 0x400000, s{sT3}
s_lshl_b32 s{sT2}, s{sT2}, 5
s_lshl_b32 s{sT}, s{sT}, 1
s_add_u32 s{sT2}, s{sT2}, s{sT}
s_lshl_b32 s{sT3}, s{sT2}, 18
{'s_and_b32 s%d, s%d, 0x380000' % (sT3, sT3) if getattr(cfg, 'kvshare', False) else ''}
s_add_u32 s{sK}, s{sPTR+2}, s{sT3}
s_addc_u32 s{sK+1}, s{sPTR+3}, 0
s_add_u32 s{sV}, s{sPTR+4}, s{sT3}
s_addc_u32 s{sV+1}, s{sPTR+5}, 0
s_lshl_b32 s3, s3, 8
s_add_u32 s{sT2}, s{sT2}, s3
s_lshl_b32 s{sT3}, s{sT2}, 16
s_add_u32 s{sO}, s{sWS}, s{sT3}
s_addc_u32 s{sO+1}, s{sWS+1}, 0
{tlbwarm()}
s_mov_b32 s{sX+2}, 0x40000
s_mov_b32 s{sX+3}, 0x20000
s_mov_b32 s{sW+3}, 0x20000
s_mov_b32 s{sK+2}, 0x80000
s_mov_b32 s{sK+3}, 0x20000
s_mov_b32 s{sV+2}, 0x80000
s_mov_b32 s{sV+3}, 0x20000
s_mov_b32 s{sO+2}, 0x20000
s_mov_b32 s{sO+3}, 0x20000""".split('\n')
    p.raw(L)
    L = [f"s_add_u32 s{sXd}, s{sXm}, {XS0}"]
    for pre, d in w_dma_list(0, 3*KT) + x_dma_list(0) + [(w_adv(), None)] + w_dma_list(1, KT):
        L += pre + (["s_nop 0"] if pre and 'm0' in pre[-1] else []) + ([d] if d else [])
    L += [f"s_mov_b32 s{sWs}, {3*KT}", f"s_mov_b32 s{sTog}, 0", f"s_mov_b32 s{sXs}, {XS0}", f"s_mov_b32 s{sJ}, 0", f"s_and_b32 s{sK0}, s{sRot}, 15", f"s_lshl_b32 s{sK0}, s{sK0}, 14", f"s_add_u32 s{sK0}, s{sK0}, s{sW4}"]
    L.append(pst(3))
    L += [f"s_mov_b32 s{sC}, {f2u(CSCALE):#x}", f"s_mov_b32 s{sC+1}, {f2u(CSCALE):#x}",
          f"s_mov_b64 {sr(sBad,2)}, 0", f"s_mov_b64 {sr(sBad+2,2)}, 0",
          f"v_mov_b32 v12, {FLAG}", f"v_mov_b32 v13, 0", f"ds_write_b32 v12, v13",
          f"v_add_u32 v{vXr}, {XS0}, v{vXl0}", f"v_add_u32 v{vWr}, {3*KT}, v{vWl}",
          pst(4), f"s_waitcnt vmcnt(@w0+x0) lgkmcnt(0)", pst(5), "s_barrier", pst(6)]
    for qb in range(4): L.append(xread(0, qb))
    for i, pos in enumerate(WPOS):
        if pos < 64: L.append(wread(i//2, i & 1))
    p.raw(L)
    stamp(p, 1)
    if getattr(cfg, 'tstamp', False) == 'q': p.raw(['s_mov_b32 s100, 0', 's_mov_b32 s98, 0'])
    q_phase(p)
    stamp(p, 2)
    if getattr(cfg, 'tstamp', False) == 'q': p.raw(["s_waitcnt lgkmcnt(0)", "v_writelane_b32 v14, s98, 15", "s_memrealtime s[98:99]", "s_waitcnt lgkmcnt(0)", "v_writelane_b32 v14, s98, 16", f"s_lshl_b32 s{sT}, s2, 10", f"s_add_u32 s{sT}, s{sT}, 0x4020000", f"s_add_u32 s96, s{sWS}, s{sT}", f"s_addc_u32 s97, s{sWS+1}, 0",
                  "v_lshlrev_b32 v15, 2, v0", "global_store_dword v15, v14, s[96:97]", "s_waitcnt vmcnt(0)"])
    if getattr(cfg, 'tstamp', False) is True: p.raw(["s_mov_b32 s100, 0", "s_mov_b32 s98, 0"])
    q_epilogue(p)
    p.raw([f"s_mov_b32 s{sWoS+2}, 0x400000", f"s_mov_b32 s{sWoS+3}, 0x20000", f"s_lshr_b32 s{sT}, s2, 3", f"s_lshl_b32 s{sT}, s{sT}, 2", f"s_and_b32 s{sT2}, s2, 3", f"s_add_u32 s{sT}, s{sT}, s{sT2}",
           f"s_lshl_b32 s{sT}, s{sT}, 15", f"v_lshlrev_b32 v{vM2+4}, 7, v0", f"v_add_u32 v{vM2+4}, s{sT}, v{vM2+4}"])
    p.raw([f"v_mov_b32 v{vR+1}, {LBOUND:#x}", f"s_mov_b32 s{sCur}, 0", f"s_mov_b32 s{sTc}, 3"] + soff_adv())
    if not getattr(cfg, 'st3late', False): stamp(p, 3)
    att_step(p, 3, qk=(0, True))
    att_step(p, 0, qk=(0, True), sm=True, vreads='head', extra=[(3 + 8*i, pre, d) for i, (pre, d) in enumerate(kv_static_list(False, 3))])
    info = {}
    info['first0'] = body(p, 'first', 0)
    if getattr(cfg, 'st3late', False): stamp(p, 3)
    info['loopA'] = loop(p, "LOOP_A", 0, 14)
    stamp(p, 4)
    info['last'] = body(p, 'last', 0)
    info['first1'] = body(p, 'first', 1)
    info['loopB'] = loop(p, "LOOP_B", 1, 14)
    stamp(p, 5)
    info['final'] = body(p, 'final', 1)
    stamp(p, 6)
    p.raw([f"s_lshl_b32 s{sT}, s2, 7", f"s_add_u32 s{sT}, s{sT}, {gk2z.FLAG_OFF}", f"s_add_u32 s96, s{sWS}, s{sT}", f"s_addc_u32 s97, s{sWS+1}, 0", "v_mov_b32 v12, 0",
           "v_lshlrev_b32 v13, 2, v0", "v_and_b32 v13, 0x7c, v13", "global_store_dword v13, v12, s[96:97] sc1"])
    L = f"""s_cmp_lg_u64 {sr(sBad,2)}, 0
s_cselect_b32 s{sT}, 1, 0
s_cmp_lg_u64 {sr(sBad+2,2)}, 0
s_cselect_b32 s{sT2}, 2, 0
s_or_b32 s{sT}, s{sT}, s{sT2}
v_mov_b32 v12, {FLAG}
v_mov_b32 v13, s{sT}
ds_or_b32 v12, v13
s_waitcnt lgkmcnt(0)
s_barrier
ds_read_b32 v13, v12
s_waitcnt lgkmcnt(0)
v_readfirstlane_b32 s{sT2}, v13""".split('\n')
    p.raw(L)
    if cfg.stamps:
        L = [f"s_waitcnt vmcnt(0)", f"s_memrealtime {sr(sST+28,2)}", f"s_memtime {sr(sST+30,2)}", f"s_load_dwordx2 s[96:97], s[0:1], 88", "s_waitcnt lgkmcnt(0)",
             f"s_lshl_b32 s{sT}, s2, 7", f"s_add_u32 s{sT}, s{sT}, 0x4000000", f"s_add_u32 s96, s{sWS}, s{sT}", f"s_addc_u32 s97, s{sWS+1}, 0", "v_mov_b32 v20, 0"]
        for i in range(8):
            L += [f"v_mov_b32 v{16+r}, s{sST+4*i+r}" for r in range(4)]
            L += [f"global_store_dwordx4 v20, v[16:19], s[96:97] offset:{16*i}", "s_nop 1"]
        if getattr(cfg, 'tstamp', False) is True:
            L += ["s_mov_b32 m0, s100", "s_nop 1", "v_writelane_b32 v116, s98, m0", f"s_lshl_b32 s{sT}, s2, 10", f"s_add_u32 s{sT}, s{sT}, 0x4020000", f"s_add_u32 s96, s{sWS}, s{sT}", f"s_addc_u32 s97, s{sWS+1}, 0",
                  "v_lshlrev_b32 v20, 2, v0", "global_store_dword v20, v116, s[96:97]"]
        p.raw(L)
    p.raw([f"s_cmp_eq_u32 s{sT2}, 0", "s_cbranch_scc1 K1_END"])
    main_trace = list(p.trace)
    p.raw([f"s_bitcmp1_b32 s{sT2}, 0", "s_cbranch_scc1 SLOW_T0", "SLOW_T1:", f"s_mov_b32 s{sT3}, 1", f"s_mov_b32 s{sT2}, 0"] +
          [f"v_accvgpr_mov_b32 a{aQ[0]+r}, a{aQ[1]+r}" for r in range(64)] + ["s_branch SLOW_TASK", "SLOW_T0:", f"s_mov_b32 s{sT3}, 0", f"s_and_b32 s{sT2}, s{sT2}, 2"])
    slow_path(p)
    p.raw([f"s_cmp_lg_u32 s{sT2}, 0", "s_cbranch_scc1 SLOW_T1"])
    p.label("K1_END"); p.raw(["s_endpgm"])
    bad = check_hazards(p.trace); assert getattr(cfg, 'strip', '') or not bad, bad[:5]
    bad = check_counters(p.trace); assert getattr(cfg, 'tstamp', False) or getattr(cfg, 'pst', False) or not bad, bad[:5]
    return p, info

import gen_k2 as gk2x, gen_k2z as gk2z
def gen_k2(P, c, n): return (gk2x if getattr(c, 'k2', 'z') == 'x' else gk2z).gen_k2(P, c, n)

def kd(name, vg, acc, sg=102):
    return f""".amdhsa_kernel {name}
  .amdhsa_next_free_vgpr {vg}
  .amdhsa_next_free_sgpr {sg}
  .amdhsa_accum_offset {acc}
  .amdhsa_group_segment_fixed_size 0
  .amdhsa_kernarg_size 104
  .amdhsa_user_sgpr_count 2
  .amdhsa_user_sgpr_kernarg_segment_ptr 1
  .amdhsa_system_sgpr_workgroup_id_x 1
.end_amdhsa_kernel"""

def generate():
    hdr = [l for l in open("cdna_kernels/" + NAME + ".s.ref").read().split('\n') if l.startswith(';') and '@launch' not in l and 'Override' not in l and 'grid=ceil' not in l]
    hdr = hdr[:15]
    p1, info = gen_k1()
    p2, lds2 = gen_k2(Prog, cfg, K2)
    T = hdr + ([] if getattr(cfg, 'k2only', False) else [f"; @launch kernel={K1} grid=(256,1,1) block=(256,1,1) lds={LDS1}"]) + [f"; @launch kernel={K2} grid=(256,1,1) block=(256,1,1) lds={lds2}"] + ([f"; @launch kernel={K2} grid=(256,1,1) block=(256,1,1) lds={lds2}"] if getattr(cfg, 'k2twice', False) else []) + [
               '.amdgcn_target "amdgcn-amd-amdhsa--gfx950"', ".text",
               f".globl {K1}", f".type {K1},@function", f".globl {K2}", f".type {K2},@function"]
    T += [x.text for x in p1.out] + [x.text for x in p2.out] + ["CODE_END:", '.section .rodata,"a"', ".p2align 6", kd(K1, 512, 256), ".p2align 6", kd(K2, 512, 256)]
    return "\n".join(T) + "\n", info, p1

if __name__ == "__main__":
    out = sys.argv[1] if len(sys.argv) > 1 else "cdna_kernels/" + NAME + ".s"
    for a in sys.argv[2:]:
        k, v = a.split('=', 1)
        setattr(cfg, k, {'True': True, 'False': False}.get(v, v))
    s, info, p1 = generate()
    open(out, "w").write(s)
    print(info, "nops", p1.nops, "lines", s.count('\n'))
```

```python
import sys, math, re
from asmlib import *

NAME = "concat_heads__mha_block_cached__gqa_block_cached__near_ridge"
K1 = NAME + "_kernel"
PART_OFF = 0x2000000
FLAG_OFF = 0x2800000

class Cfg:
    kv_flags = "nt"
    x_flags = ""
    w_flags = ""
    krot = "2"
    kvsteps = "2,3,4"
    o_st_flags = "sc1"
    o1_st_flags = "sc1"
    stamps = False
    wotouch = False
    wo_flags = ""
    park = True
    wotq = 1
    otouch = "1"
    kvpf = 0
    kvpf_flags = ""
    out_flags = ""
cfg = Cfg()

KT = 16896; VBASE = 4*KT
XS0 = 84480
SCR = 150016; SCRW = 2304; FLAG = 163836
LDS1 = 163840
CSCALE = math.log2(math.e) / math.sqrt(128.0)
import struct
f2u = lambda f: struct.unpack('<I', struct.pack('<f', f))[0]
LBOUND = f2u(2.0**24)

sX, sW, sK, sV, sO = 4, 8, 12, 16, 20
sPTR = 24
sWS = 32
sCODE = 36
sWv, sXm, sWm, sKVm, sKk, sXo, sWo = 40, 41, 42, 43, 44, 45, 46
sCur, sNxt, sMk, sSoff, sCnt, sOo = 47, 48, 49, 50, 51, 52
sC = 54
sBad = 56; sEx = 58
sBound = 60
sT = 61; sT2 = 62; sT3 = 63
sWoS = 36
sOr, sWp = 4, 8
sOut, sP, sPp, sFl, sCt, sWoP, sOutP, sDbgP = 64, 68, 72, 76, 80, 82, 84, 86
sSpin = 28; sRole = 30; sOK = 31; sXa = 74
sPo, sPw, sM8, sTo, sRh, sKh, sBad0, sPubAt, sNoPub = 88, 89, 90, 91, 92, 93, 94, 95, 60
sRot = 53; sTc = 34; sW4 = 35
sWs, sWn, sXs, sTog, sKp, sXd, sJ, sK0 = 47, 48, 49, 50, 52, 60, 24, 25
vKV = 1
vXe, vXl0, vW0, vWl, vXr, vWr = 2, 4, 6, 10, 12, 13
vKl, vVl, vK, vV, vOo = 2, 3, 4, 5, 6
vM, vM2, vR = 7, 8, 9
ONES, L0, NEGM, P0, S0, TMP, O0 = 16, 20, 36, 52, 68, 100, 128
vPO, vPO2, vPW, vPW2, vPR, vZ, vCk, vTo, vDum, vTs = 116, 117, 118, 119, 120, 121, 122, 124, 125, 126
WF, ACC, PX = 36, 128, 192
vST = 15
vOT = 127; vWT = 14
vPF = 11; sPF = 29
aK, aV, aQ = 0, 64, (128, 192)
aXb = (0, 16); aAcc = 32

def vr(b, n=4): return f"v[{b}:{b+n-1}]"
def ar(b, n=4): return f"a[{b}:{b+n-1}]"
def sr(b, n=4): return f"s[{b}:{b+n-1}]"
MF = "v_mfma_f32_16x16x32_bf16"

class Prog:
    def __init__(self):
        self.out = []
        self.trace = []
        self.pend = []
        self.nops = 0
        self.vmtags = []
    def resolve(self, seg):
        out = []
        for c in seg:
            m = re.search(r'vmcnt\(@(\S+?)\)', c.text)
            if m:
                tags = m.group(1).split('+')
                idx = max(i for i, t in enumerate(self.vmtags) if t in tags)
                for t in tags: assert t in self.vmtags, t
                n = min(len(self.vmtags) - 1 - idx, 63)
                c = Ins(c.text.replace(m.group(0), f"vmcnt({n})"))
            if c.kind == 'g':
                m = re.search(r';\s*tag=(\S+)', c.text)
                self.vmtags.append(m.group(1) if m else '-')
            out.append(c)
        return out
    def raw(self, lines):
        seg = [Ins(l) for l in ('\n'.join(lines) if isinstance(lines, list) else lines).split('\n') if l.strip()]
        seg = self.autowait(seg, None)
        self.commit(seg)
    def commit(self, seg, fix=True):
        seg = self.resolve(seg)
        if fix:
            seg, n = fix_hazards(seg, self.trace[-30:]); self.nops += n
        self.out += seg; self.trace += seg
        return seg
    def autowait(self, seg, slots):
        issued = []
        issued = [[-1, d] for d in self.pend]
        inserts = {}
        lastslot = None
        for i, c in enumerate(seg):
            if slots is not None and i in slots: lastslot_new = i
            else: lastslot_new = None
            if c.mn == 's_waitcnt':
                m = re.search(r'lgkmcnt\((\d+)\)', c.text)
                if m:
                    n = int(m.group(1))
                    while len(issued) > n: issued.pop(0)
            else:
                touched = set(c.rd) | (set(c.wr) if c.kind != 'l' else set())
                k = max((q for q, (idx, d) in enumerate(issued) if d & touched), default=None)
                if k is not None:
                    pos = i
                    if lastslot is not None and issued[k][0] < lastslot and c.kind == 'm': pos = lastslot
                    n = sum(1 for q in range(k+1, len(issued)) if issued[q][0] < pos)
                    n = min(n, 15)
                    inserts[pos] = min(inserts.get(pos, 99), n)
                    before = [q for q in range(len(issued)) if issued[q][0] < pos]
                    drop = len(before) - n
                    issued = issued[drop:]
                if c.kind == 'l': issued.append([i, set(c.wr)])
            if lastslot_new is not None: lastslot = lastslot_new
        self.pend = [d for _, d in issued]
        out = []
        for i, c in enumerate(seg):
            if i in inserts: out.append(Ins(f"s_waitcnt lgkmcnt({inserts[i]})"))
            out.append(c)
        return out
    def gaps(self, gaps, fix=True):
        seg = []; slots = set()
        for g in gaps:
            if g.get('m'): seg.append(Ins(g['m']))
            slots.add(len(seg))
            seg += [Ins(y) for x in g['s'] + g['v'] for y in x.split('\n')]
        seg = self.autowait(seg, slots)
        return self.commit(seg, fix)
    def label(self, l): self.out.append(Ins(l + ":"))

def same_or_stricter(first, cur):
    assert len(first) == len(cur), (len(first), len(cur))
    for a, b in zip(first, cur):
        if a == b: continue
        ma, mb = re.search(r'vmcnt\((\d+)\)', a), re.search(r'vmcnt\((\d+)\)', b)
        assert ma and mb and a.replace(ma.group(0), '') == b.replace(mb.group(0), '') and int(ma.group(1)) <= int(mb.group(1)), (a, b)
def newgaps(mf): return [dict(m=m, s=[], v=[]) for m in mf]
def iskind(t): return Ins(t).kind
def place_valu(gaps, stream, start=0):
    cost = lambda t: (2 if iskind(t) in ('e', 'g') else 1) if '\n' not in t else (2 if 'accvgpr' in t else 1)
    fixed = [sum(cost(x) for x in g['v']) for g in gaps]
    C = 2
    while True:
        plan = [[] for _ in gaps]; i = 0
        for gi in range(start, len(gaps)):
            cap = C - fixed[gi]
            if C > 2: cap = max(cap, 1)
            while i < len(stream) and cost(stream[i]) <= cap and not (C == 2 and cost(stream[i]) == 2 and fixed[gi] > 0):
                plan[gi].append(stream[i]); cap -= cost(stream[i]); i += 1
        if i == len(stream): break
        C += 1
    for g, p in zip(gaps, plan): g['v'] += p
    return C

def qacc(f, qb):
    t = None
    if f >= 12 and qb == 3: return 'a', aAcc + 4*(f-12)
    idx = f*4 + qb
    skip = sum(1 for ff in range(12, 16) if ff*4+3 < idx)
    return 'v', 16 + 4*(idx - skip)
def qacc_r(f, qb):
    t, b = qacc(f, qb); return f"{t}[{b}:{b+3}]"

def kv_dma(srd, i, soff): return f"buffer_load_dwordx4 v{vKV}, {sr(srd)}, s{soff} offen offset:{i*1024} {cfg.kv_flags} lds"
def w_adv(): return [f"s_add_u32 s{sKk}, s{sKk}, 1", f"s_and_b32 s{sKk}, s{sKk}, 15", f"s_lshl_b32 s{sWo}, s{sKk}, 18"]
def x_adv(): return [f"s_add_u32 s{sKp}, s{sKp}, 1", f"s_and_b32 s{sKp}, s{sKp}, 7", f"s_lshl_b32 s{sXo}, s{sKp}, 7"]
def w_dma_list(t, slot):
    m = f"s_add_u32 m0, s{sKVm}, {slot if isinstance(slot, int) else 's%d' % slot[0]}"
    return [([m] if i == 0 else [], f"buffer_load_dwordx4 v{vW0+i}, {sr(sW)}, s{sWo} offen offset:{i*1056} {cfg.w_flags} lds ; tag=w{t}") for i in range(4)]
def x_dma_list(P):
    return [([f"s_add_u32 m0, s{sXd}, {i*1024}", f"s_add_u32 s{sT}, s{sXo}, {i*8192}"], f"buffer_load_dwordx4 v{vXe+(i&1)}, {sr(sX)}, s{sT} offen {cfg.x_flags} lds ; tag=x{P}") for i in range(8)]
def kv_static_list(isV, tile):
    L = []
    base = (VBASE if isV else 0) + (tile % 4)*KT
    for i in range(4):
        pre = [f"s_add_u32 m0, s{sKVm}, {base + i*32}"]
        if i == 0: pre = [f"s_add_u32 s{sT}, s{sRot}, {tile}", f"s_and_b32 s{sT}, s{sT}, 15", f"s_lshl_b32 s{sT}, s{sT}, 14", f"s_add_u32 s{sT}, s{sT}, s{sW4}"] + pre
        L.append((pre, kv_dma(sV if isV else sK, i, sT) + f" ; tag={'V' if isV else 'K'}{tile}"))
    return L
def soff_adv():
    return [f"s_add_u32 s{sTc}, s{sTc}, 1", f"s_add_u32 s{sT}, s{sTc}, s{sRot}", f"s_and_b32 s{sT}, s{sT}, 15", f"s_and_b32 s{sSoff}, s{sTc}, 48",
            f"s_or_b32 s{sSoff}, s{sSoff}, s{sT}", f"s_lshl_b32 s{sSoff}, s{sSoff}, 14", f"s_add_u32 s{sSoff}, s{sSoff}, s{sW4}"]
def xread(t, qb): return f"ds_read_b128 {ar(aXb[t&1]+4*qb)}, v{vXr} offset:{qb*2048}"
def wread(f, u): return f"ds_read_b64_tr_b16 {ar(aV+4*f+2*u, 2)}, v{vWr} offset:{(f>>3)*8448 + u*256 + ((f&7)>>1)*64 + (f&1)*8}"
WPOS = [37 + int(i*1.6) for i in range(32)]

def put_dmas(g, dl, pos, step=2, limit=64):
    last = None
    for pre, d in dl:
        npre = (len(pre) + 1) // 2
        if last is not None: pos = max(last + 1, last + step - npre)
        for k, x in enumerate(pre): g[pos + k//2]['s'].append(x)
        pos += npre
        g[pos]['v'].append(d)
        last = pos
    assert pos < limit, pos
    return pos

def q_step(p, t, ctl=None):
    mf = []
    for f in range(16):
        for qb in range(4):
            c = qacc_r(f, qb)
            mf.append(f"{MF} {c}, {ar(aV+4*f)}, {ar(aXb[t&1]+4*qb)}, {'0' if t == 0 else c}")
    g = newgaps(mf)
    for i, pos in enumerate(WPOS):
        if pos >= 64: g[pos-64]['v'].append(wread(i//2, i & 1))
    P = t >> 1
    if t == 0:
        dl = x_dma_list(1); dl[0] = (x_adv() + [f"s_add_u32 s{sXd}, s{sXm}, {XS0 + 32768}"] + dl[0][0], dl[0][1])
        w2 = w_dma_list(2, 2*KT); w2[0] = (w_adv() + w2[0][0], w2[0][1])
        put_dmas(g, w2 + [(a, b) for a, b in dl], 0, step=2, limit=31)
    elif t & 1 and P + 2 <= 7:
        dl = x_dma_list(P + 2); dl[0] = (x_adv() + [f"s_add_u32 s{sXd}, s{sXm}, s{sXs}"] + dl[0][0], dl[0][1])
        put_dmas(g, dl, 1, step=3, limit=31)
    elif 2 <= t <= 10:
        pre = [f"s_min_u32 s{sT3}, s{sJ}, 3", f"s_add_u32 s{sJ}, s{sJ}, 1", f"s_mul_i32 s{sT2}, s{sT3}, 1056", f"s_lshl_b32 s{sT3}, s{sT3}, 10", f"s_add_u32 s{sT3}, s{sT3}, s{sK0}", f"s_add_u32 s{sT2}, s{sT2}, s{sKVm}"]
        put_dmas(g, [(pre + [f"s_mov_b32 m0, s{sT2}"], kv_dma(sK, 0, sT3) + " ; tag=K0"), ([f"s_add_u32 m0, s{sT2}, {VBASE}"], kv_dma(sV, 0, sT3) + " ; tag=V0")], 2, step=12, limit=31)
    kvpf = int(cfg.kvpf)
    if kvpf and 2 <= t <= 11:
        g[int(getattr(cfg, 'kvpos', 60))]['v'].append(f"buffer_load_dword a48, v{vPF}, {sr(sK)}, s{sPF} offen {cfg.kvpf_flags}")
        g[61]['s'].append(f"s_add_u32 s{sPF}, s{sPF}, 16384")
    if int(cfg.wotq) and 2 <= t <= 11:
        g[54]['v'].append(f"buffer_load_dword a48, v{vWT}, {sr(sWoS)}, s{sTo} offen {getattr(cfg, 'wotq_flags', '')}")
        g[55]['s'].append(f"s_add_u32 s{sTo}, s{sTo}, 6656")
    need = f"w{t+1}" + (f"+x{(t+1)>>1}" if t & 1 else "")
    g[31]['s'].append(f"s_waitcnt vmcnt(@{need}) lgkmcnt(0)" if t < 15 else "s_waitcnt lgkmcnt(0)")
    g[32]['s'].append("s_barrier")
    if t < 15:
        g[28]['s'].append(f"s_add_u32 s{sWn}, s{sWs}, {KT}"); g[29]['s'] += [f"s_cmp_eq_u32 s{sWn}, {4*KT}"]; g[30]['s'] += [f"s_cselect_b32 s{sWn}, {KT}, s{sWn}"]
        if t & 1:
            g[27]['s'].append(f"s_xor_b32 s{sTog}, s{sTog}, 32768")
            g[30]['s'].append(f"s_add_u32 s{sXs}, s{sTog}, {XS0}")
        g[32]['v'] += [f"v_add_u32 v{vXr}, s{sXs}, v{vXl0 + ((t+1) & 1)}", f"v_add_u32 v{vWr}, s{sWn}, v{vWl}"]
        for qb in range(4): g[33+qb]['v'].append(xread(t+1, qb))
        for i, pos in enumerate(WPOS):
            if pos < 64: g[pos]['v'].append(wread(i//2, i & 1))
    if t + 3 <= 15:
        dl = w_dma_list(t+3, (sWs,)); dl[0] = (w_adv() + dl[0][0], dl[0][1])
        put_dmas(g, dl, 34, step=6, limit=58)
    elif t == 13: put_dmas(g, kv_static_list(False, 1) + kv_static_list(True, 1), 33, step=3, limit=59)
    elif t == 14: put_dmas(g, kv_static_list(False, 2), 33, step=5)
    else: put_dmas(g, kv_static_list(True, 2), 33, step=5)
    if t < 15: g[58]['s'].append(f"s_mov_b32 s{sWs}, s{sWn}")
    if getattr(cfg, 'tstamp', False) == 'q' and t < 15:
        g[59]['s'].append(f"s_mov_b32 m0, s3"); g[60]['v'].append("v_writelane_b32 v14, s96, m0")
        g[61]['s'].append(f"s_memrealtime s[96:97]"); g[61]['s'].append("s_add_u32 s3, s3, 1")
    if ctl:
        g[-2]['s'].append(ctl[0]); g[-1]['s'].append(ctl[1]); g[-1]['v'].append(ctl[2])
    qs = getattr(cfg, 'qstrip', '')
    for x in g:
        if 'm' in qs: x['m'] = None
        if 'l' in qs: x['v'] = [y for y in x['v'] if iskind(y) != 'l']
    p.gaps(g)

def q_phase(p):
    q_step(p, 0); q_step(p, 1)
    if getattr(cfg, 'qunroll', False):
        for t in range(2, 12): q_step(p, t)
    else:
        p.raw([f"s_mov_b32 s{sCnt}, 5"])
        p.label("LOOP_Q")
        for rep in range(5):
            n0 = len(p.out)
            q_step(p, 2+2*rep)
            q_step(p, 3+2*rep, (f"s_sub_u32 s{sCnt}, s{sCnt}, 1", f"s_cmp_lg_u32 s{sCnt}, 0", "s_cbranch_scc1 LOOP_Q"))
            cur = [x.text.split(';')[0] for x in p.out[n0:]]
            if rep == 0: first = cur
            else:
                same_or_stricter(first, cur)
                del p.out[n0:]
    for t in range(12, 16): q_step(p, t)

def q_epilogue(p):
    L = [f"v_bfe_u32 v12, v0, 4, 2"]
    def pack(bs, dst):
        r = []
        for b in bs: r += [f"v_pk_mul_f32 {vr(b,2)}, {vr(b,2)}, {sr(sC,2)}", f"v_pk_mul_f32 {vr(b+2,2)}, {vr(b+2,2)}, {sr(sC,2)}"]
        for b in bs: r.append(f"v_cvt_pk_bf16_f32 v{b}, v{b}, v{b+1}")
        for b in bs: r.append(f"v_cvt_pk_bf16_f32 v{b+1}, v{b+2}, v{b+3}")
        for d, b in enumerate(bs): r += [f"v_accvgpr_write_b32 a{dst+2*d}, v{b}", f"v_accvgpr_write_b32 a{dst+2*d+1}, v{b+1}"]
        return r
    pieces = [(1, 3, 1)] + [(hh, qb, half) for hh in range(2) for qb in range(4) for half in range(2) if (hh, qb, half) != (1, 3, 1)]
    for n, (hh, qb, half) in enumerate(pieces):
        bs = [qacc(hh*8 + half*4 + d, qb)[1] for d in range(4)]
        dst = aQ[hh] + 16*qb + 8*half
        if n == 0:
            for pair in range(2):
                for d in range(2):
                    for r in range(4): L.append(f"v_accvgpr_read_b32 v{2+4*d+r}, a{bs[2*pair+d]+r}")
                L += pack([2, 6], dst + 4*pair)
            L += [f"v_and_b32 v11, 15, v0", f"v_mul_u32_u24 v11, 1056, v11", f"v_lshl_add_u32 v11, v12, 4, v11"]
            for kb in range(4):
                for s in range(4): L.append(f"ds_read_b128 {ar(aK+16*kb+4*s)}, v11 offset:{kb*256+s*64}")
        else:
            L += pack(bs, dst)
    L += [f"v_mov_b32 v{vKl}, v11",
          f"v_bfe_u32 v7, v0, 2, 4", f"v_mul_u32_u24 v7, 1056, v7", f"v_and_b32 v8, 3, v0", f"v_lshl_add_u32 v7, v8, 3, v7", f"v_add_u32 v{vVl}, {VBASE}, v7",
          f"v_mov_b32 v{vV}, v{vVl}",
          f"s_lshl_b32 s{sT}, s{sWv}, 14", f"v_add_u32 v{vOo}, s{sT}, v{vKV}"]
    for r in range(4): L.append(f"v_mov_b32 v{ONES+r}, 0x3f803f80")
    p.raw(L)

def kread(kb, s): return f"ds_read_b128 {ar(aK+16*kb+4*s)}, v{vK} offset:{kb*256+s*64}"
def vread(db, ks, u): return f"ds_read_b64_tr_b16 {ar(aV+8*db+4*ks+2*u, 2)}, v{vV} offset:{(2*ks+u)*256+db*32}"
VREADS = [vread(db, ks, u) for db in range(8) for ks in range(2) for u in range(2)]
def vslots():
    pos = []; g = 7
    while len(pos) < 32:
        gg = g % 34
        if gg % 2 == 1 or gg >= 32:
            n = 1 if (gg % 4 == 3 and gg < 32) else 2
            pos += [g]*n
        g += 1
    return pos[:32]
VPOS = vslots()
KPOS = [5,7,9,11, 13,15,17,19, 21,23,25,27, 29,31,32,33]

DMAPOS = [(3, 5), (3, 13), (3, 21), (3, 29), (0, 5), (1, 13), (1, 21), (1, 29)]

def softmax_stream(j, first):
    Sr = S0 + 16*(j & 1); Pw = P0 + 8*(j & 1); L = []
    if first:
        L.append(f"v_max3_f32 v{vM}, v{Sr}, v{Sr+1}, v{Sr+2}")
        for i in range(3, 15, 2): L.append(f"v_max3_f32 v{vM}, v{vM}, v{Sr+i}, v{Sr+i+1}")
        L.append(f"v_max_f32 v{vM}, v{vM}, v{Sr+15}")
        L += [f"v_mov_b32 v{vM2}, v{vM}", f"v_permlane32_swap_b32 v{vM}, v{vM2}", f"v_max_f32 v{vM}, v{vM}, v{vM2}",
              f"v_mov_b32 v{vM2}, v{vM}", f"v_permlane16_swap_b32 v{vM}, v{vM2}", f"v_max_f32 v{vM}, v{vM}, v{vM2}"]
        for i in range(16): L.append(f"v_sub_f32 v{Sr+i}, v{Sr+i}, v{vM}")
        for r in range(4): L.append(f"v_sub_f32 v{NEGM+4*j+r}, 0, v{vM}")
    for e in range(16):
        L.append(f"v_exp_f32 v{Sr+e}, v{Sr+e}")
        if e % 2 == 1: L.append(f"v_cvt_pk_bf16_f32 v{Pw+e//2}, v{Sr+e-1}, v{Sr+e}")
    return L

def epi_stream(task, qb, park=None):
    if park is None: park = (task == 0 and cfg.park)
    L = [f"v_rcp_f32 v{vR}, v{L0+4*qb}", f"v_cmp_nle_f32 vcc, v{L0+4*qb}, v{vR+1}",
         f"s_cmp_lg_u64 vcc, 0\ns_cselect_b32 s{sOo}, {1 << (4*task+qb)}, 0\ns_cselect_b64 {sr(sEx,2)}, 0, -1\ns_or_b32 s{sBad}, s{sBad}, s{sOo}"]
    if not park: L.append(f"s_mov_b32 s{sOo}, {task*65536 + qb*4096}")
    for s in range(4):
        for h in range(2):
            b = O0 + 32*qb + 4*(2*s+h)
            for r in range(4): L.append(f"v_mul_f32 v{b+r}, v{b+r}, v{vR}")
            L += [f"v_cvt_pk_bf16_f32 v{TMP+4*s+2*h}, v{b}, v{b+1}", f"v_cvt_pk_bf16_f32 v{TMP+4*s+2*h+1}, v{b+2}, v{b+3}"]
        if park:
            L.append("\n".join([f"s_mov_b64 exec, {sr(sEx,2)}"] + [f"v_accvgpr_write_b32 a{aQ[0]+16*qb+4*s+r}, v{TMP+4*s+r}" for r in range(4)] + ["s_mov_b64 exec, -1"]))
        else:
            L.append(f"buffer_store_dwordx4 {vr(TMP+4*s)}, v{vOo}, {sr(sO)}, s{sOo} offen offset:{s*1024} {cfg.o_st_flags if task else cfg.o1_st_flags} ; tag=ost{task}")
    return L
def parked_stores():
    return [([f"s_mov_b32 s{sOo}, {qb*4096}"] if s == 0 else [], f"buffer_store_dwordx4 {ar(aQ[0]+16*qb+4*s)}, v{vOo}, {sr(sO)}, s{sOo} offen offset:{s*1024} {cfg.o1_st_flags} ; tag=ost0") for qb in range(4) for s in range(4)]

def att_step(p, j, qk=None, sm=None, pv=None, kreads=False, vreads=None, bar=None, dma=False, epi=None, tailctl=None, extra=(), xs=(), xv=(), dmalist=None, post=()):
    qkm = []; pvm = []; summ = []
    if qk is not None:
        task, first = qk; q = (j+1) & 3; Sw = S0 + 16*((j+1) & 1)
        for kb in range(4):
            ch = []
            for s in range(4):
                c = vr(Sw+4*kb) if s else ('0' if first else vr(NEGM+4*q))
                ch.append(f"{MF} {vr(Sw+4*kb)}, {ar(aK+16*kb+4*s)}, {ar(aQ[task]+16*q+4*s)}, {c}")
            qkm.append(ch)
    if pv is not None:
        q = (j+3) & 3; Pr = P0 + 8*((j+1) & 1)
        for db in range(8):
            o = vr(O0+32*q+4*db)
            pvm.append([f"{MF} {o}, {ar(aV+8*db+4*ks)}, {vr(Pr+4*ks)}, {'0' if (pv and ks == 0) else o}" for ks in range(2)])
        l = vr(L0+4*q)
        summ = [f"{MF} {l}, {vr(ONES)}, {vr(Pr+4*ks)}, {'0' if (pv and ks == 0) else l}" for ks in range(2)]
    mf = []
    for i in range(4):
        mf += qkm[i] if qkm else [None]*4
        mf += (pvm[2*i] + pvm[2*i+1]) if pvm else [None]*4
    mf += summ if summ else [None]*2
    g = newgaps(mf)
    if vreads == 'head':
        for pos, r in zip(VPOS, VREADS):
            if pos < 34: g[pos]['v'].append(r)
    if vreads == 'tail':
        for pos, r in zip(VPOS, VREADS):
            if pos >= 34: g[pos-34]['v'].append(r)
    if kreads:
        g[0]['s'] += [f"s_add_u32 s{sNxt}, s{sCur}, {KT}"]
        g[1]['s'] += [f"s_cmp_eq_u32 s{sNxt}, {4*KT}", f"s_cselect_b32 s{sNxt}, 0, s{sNxt}"]
        g[1]['v'].append(f"v_add_u32 v{vK}, s{sNxt}, v{vKl}")
        if bar is not None:
            g[3]['s'].append(f"s_waitcnt vmcnt({bar})")
            g[4]['s'].append("s_barrier")
        g[6]['s'].append(f"s_add_u32 s{sMk}, s{sCur}, s{sKVm}")
        for pos, (kb, s) in zip(KPOS, [(kb, s) for kb in range(4) for s in range(4)]): g[pos]['v'].append(kread(kb, s))
    if dma:
        if j == 3: g[1]['v'].append(f"v_add_u32 v{vV}, s{sNxt}, v{vVl}")
        for d, (dj, pos) in enumerate(DMAPOS):
            if dj != j: continue
            isV, i = d >> 2, d & 3
            if dmalist is not None:
                if dmalist:
                    g[pos-1]['s'] += dmalist[d][0]; g[pos]['v'].append(dmalist[d][1])
                continue
            g[pos-1]['s'].append(f"s_add_u32 m0, s{sMk}, {isV*VBASE + i*32}")
            if not getattr(cfg, 'nodma', False): g[pos]['v'].append(kv_dma(sV if isV else sK, i, sSoff))
        lastj, lastpos = DMAPOS[-1]
        if j == lastj:
            upd = [f"s_mov_b32 s{sCur}, s{sNxt}"] + soff_adv()
            for k, x in enumerate(upd): g[lastpos + 1 + k//2]['s'].append(x)
    for pos, pre, d in extra:
        for k, x in enumerate(pre): g[pos - 1 - (len(pre) - 1 - k)//2]['s'].append(x)
        g[pos]['v'].append(d)
    for pos, x in xs: g[pos]['s'].append(x)
    for pos, x in xv: g[pos]['v'].append(x)
    if getattr(cfg, 'tstamp', False) is True and j == 1:
        g[11]['s'].append("s_mov_b32 m0, s3")
        g[12]['v'].append(f"v_writelane_b32 v{vTs}, s96, m0")
        g[13]['s'] += ["s_memrealtime s[96:97]"]
        g[16]['s'] += ["s_add_u32 s3, s3, 1"]
    real = []
    for x in g:
        if x['m'] is None and real:
            real[-1]['s'] += x['s']; real[-1]['v'] += x['v']
        elif x['m'] is None:
            real.append(x)
        else: real.append(x)
    stream = (softmax_stream(j, sm) if sm is not None else []) + (epi_stream(*epi) if epi else []) + list(post)
    C = place_valu(real, stream) if stream else 2
    if tailctl:
        real[-2]['s'].append(tailctl[0]); real[-1]['s'].append(tailctl[1]); real[-1]['v'].append(tailctl[2])
    strip = getattr(cfg, 'strip', '')
    if strip and tailctl is not None or (strip and getattr(p, 'inloop', False)):
        for x in real:
            if 'm' in strip: x['m'] = None
            if 'v' in strip: x['v'] = [y for y in x['v'] if iskind(y) not in ('e',) and not y.startswith('v_cvt')]
            if 'l' in strip: x['v'] = [y for y in x['v'] if iskind(y) != 'l']
    p.gaps(real, fix=not strip)
    return C

def flag_or(task):
    return [f"s_and_b32 s{sT}, s{sBad}, {15 << (4*task)}\ns_cselect_b32 s{sT}, {1 << task}, 0\nv_mov_b32 v{vM2}, s{sT}", f"v_mov_b32 v{vM}, {FLAG}", f"ds_or_b32 v{vM}, v{vM2}"]

SIG = [0, 2*33792, 33792, 3*33792]
def wo_issue(k):
    return [([f"s_add_u32 m0, s{sM8}, {SIG[k % 4] + i*1056 - (i&3)*1024}"], f"buffer_load_dwordx4 v{vPW if i < 4 else vPW2}, {sr(sWp)}, s{sPw} offen offset:{(i&3)*1024} {cfg.wo_flags} lds ; tag=pw{k}") for i in range(8)]
def wo_adv(): return [f"s_add_u32 s{sPw}, s{sPw}, 0x40000", f"s_cmp_eq_u32 s{sPw}, 0x200000\ns_cselect_b32 s{sPw}, 0x20000, s{sPw}"]
def o_issue(k):
    return [f"buffer_load_dwordx4 {ar(32*(k % 4)+4*i)}, v{vPO if i < 4 else vPO2}, {sr(sOr)}, s{sPo} offen offset:{(i&3)*1024} sc1 ; tag=po{k}" for i in range(8)]
def o_adv(): return [f"s_add_u32 s{sPo}, s{sPo}, 0x20000", f"s_cmp_eq_u32 s{sPo}, 0x100000\ns_cselect_b32 s{sPo}, 0x10000, s{sPo}"]
def wreads(nb):
    b = WF + 16*(nb % 4)
    return [f"ds_read_b64_tr_b16 {vr(b+4*s+2*u, 2)}, v{vPR} offset:{(s>>1)*16896 + (2*(s&1)+u)*256 + nb*32}" for s in range(4) for u in range(2)]
def otouch(half):
    return [f"buffer_load_dword v{vDum}, v{vOT}, {sr(sOr)}, s{sT3} offen sc1" for i in range(2)], [f"s_mov_b32 s{sT3}, {half*0x10000 + i*0x20000}" for i in range(2)]
def chk1_load(): return f"global_load_dwordx2 {vr(vCk,2)}, v{vZ}, {sr(sCt,2)} sc1 ; tag=chk1"
def chk1_test():
    return [f"v_readfirstlane_b32 s{sT}, v{vCk}", f"v_readfirstlane_b32 s{sT2}, v{vCk+1}", f"s_cmp_eq_u32 s{sKh}, 0", f"s_cselect_b32 s{sT}, s{sT}, s{sT2}", f"s_and_b32 s{sT}, s{sT}, 8"]
def chk2_load(): return f"global_load_dwordx2 {vr(vCk,2)}, v{vZ}, {sr(sCt,2)} sc1 ; tag=chk2"
def chk2_test():
    return [f"v_readfirstlane_b32 s{sT}, v{vCk}", f"v_readfirstlane_b32 s{sT2}, v{vCk+1}", f"s_and_b32 s{sT3}, s{sT}, s{sT2}", f"s_cmp_eq_u32 s{sKh}, 0", f"s_cselect_b32 s{sT}, s{sT}, s{sT2}",
            f"s_lshr_b32 s{sT}, s{sT}, 16", f"s_and_b32 s{sT}, s{sT}, s{sT3}"]

def body(p, kind, task, tailctl=None):
    Cs = []
    N = dict(sm=False, pv=False)
    touch = task == 1 and cfg.wotouch
    if kind == 'loop':
        Cs.append(att_step(p, 1, qk=(task, False), **N, vreads='tail', dma=True))
        xs = [(12, f"s_cmp_eq_u32 s{sCnt}, s{sPubAt}"), (14, "s_cbranch_scc1 PUB1"), (14, "PUB1_RET:")] if task == 1 and not cfg.park else []
        Cs.append(att_step(p, 2, qk=(task, False), **N, kreads=True, bar=(18 if touch else 16), dma=True, xs=xs))
        ex = [(25, [], f"buffer_load_dword v{vDum}, v{vTo}, {sr(sWoS)}, s{sTo} offen")] if touch else []
        Cs.append(att_step(p, 3, qk=(task, False), **N, dma=True, extra=ex, xs=([(26, f"s_add_u32 s{sTo}, s{sTo}, 6144")] if touch else [])))
        Cs.append(att_step(p, 0, qk=(task, False), **N, vreads='head', dma=True, tailctl=tailctl))
    elif kind == 'first':
        e = (lambda q: (0, q)) if task == 1 else (lambda q: None)
        ex = []
        if task == 0: ex = [(13 + 5*i, pre, d) for i, (pre, d) in enumerate(kv_static_list(True, 3))]
        Cs.append(att_step(p, 1, qk=(task, True), sm=True, pv=True, vreads='tail', epi=e(2), dma=(task == 1), extra=ex))
        Cs.append(att_step(p, 2, qk=(task, True), sm=True, pv=True, kreads=True, bar=('@K1+V1' if task == 0 else (16 if cfg.park else 28)), epi=e(3), dma=True))
        Cs.append(att_step(p, 3, qk=(task, False), sm=True, pv=True, dma=True, post=(flag_or(0) if task == 1 else ())))
        Cs.append(att_step(p, 0, qk=(task, False), sm=False, pv=True, vreads='head', dma=True))
    elif kind == 'last':
        Cs.append(att_step(p, 1, qk=(0, False), **N, vreads='tail', dma=True))
        Cs.append(att_step(p, 2, qk=(0, False), **N, kreads=True, bar=16, dma=True))
        Cs.append(att_step(p, 3, qk=(1, True), **N, dma=True, epi=(0, 0)))
        Cs.append(att_step(p, 0, qk=(1, True), sm=True, pv=False, vreads='head', dma=True, epi=(0, 1)))
    elif kind == 't28':
        st = parked_stores()
        Cs.append(att_step(p, 1, qk=(1, False), **N, vreads='tail', dma=True))
        Cs.append(att_step(p, 2, qk=(1, False), **N, kreads=True, bar=16, dma=True, dmalist=[]))
        Cs.append(att_step(p, 3, qk=(1, False), **N, dma=True, dmalist=[], extra=[(5 + 4*i, pre, d) for i, (pre, d) in enumerate(st[:8])]))
        Cs.append(att_step(p, 0, qk=(1, False), **N, vreads='head', dma=True, dmalist=[], extra=[(1 + 4*i, pre, d) for i, (pre, d) in enumerate(st[8:10])]))
    elif kind == 't29' and cfg.park:
        w0 = wo_issue(0); st = parked_stores()
        Cs.append(att_step(p, 1, qk=(1, False), **N, vreads='tail', dma=True, dmalist=[], extra=[(13 + 4*i, pre, d) for i, (pre, d) in enumerate(st[10:])][:6],
                           xv=[(15, f"v_mov_b32 v{vM}, {FLAG}"), (19, f"ds_read_b32 v{vM2}, v{vM}")], post=[f"v_readfirstlane_b32 s{sBad0}, v{vM2}"]))
        Cs.append(att_step(p, 2, qk=(1, False), **N, kreads=True, bar=16, dma=True, dmalist=w0))
        Cs.append(att_step(p, 3, qk=(1, False), **N, dma=True, dmalist=w0))
        Cs.append(att_step(p, 0, qk=(1, False), **N, vreads='head', dma=True, dmalist=w0))
    elif kind == 't30' and cfg.park:
        w0 = wo_issue(0); w1 = wo_issue(1)
        Cs.append(att_step(p, 1, qk=(1, False), **N, vreads='tail', dma=True, dmalist=w0, xs=[(33, x) for k, x in enumerate(wo_adv())]))
        Cs.append(att_step(p, 2, qk=(1, False), **N, kreads=True, bar='@ost0', dma=True, dmalist=w1, xs=[(12, f"s_cmp_eq_u32 s{sWv}, 0"), (14, "s_cbranch_scc1 PUB1"), (14, "PUB1_RET:")]))
        Cs.append(att_step(p, 3, qk=(1, False), **N, dma=True, dmalist=w1))
        Cs.append(att_step(p, 0, qk=(1, False), **N, vreads='head', dma=True, dmalist=w1))
    elif kind == 't29':
        w0 = wo_issue(0)
        Cs.append(att_step(p, 1, qk=(1, False), **N, vreads='tail', dma=True, extra=[(33, [], chk1_load())], xv=[(15, f"v_mov_b32 v{vM}, {FLAG}"), (17, f"ds_read_b32 v{vM2}, v{vM}")], post=[f"v_readfirstlane_b32 s{sBad0}, v{vM2}"]))
        chk = ["s_waitcnt vmcnt(@chk1)"] + chk1_test() + [f"s_or_b32 s{sT}, s{sT}, s{sBad0}", f"s_cmp_eq_u32 s{sT}, 0", "s_cbranch_scc1 SPIN1", "SPIN1_RET:"]
        Cs.append(att_step(p, 2, qk=(1, False), **N, kreads=True, bar=1, dma=True, dmalist=w0))
        tl, tp = otouch(0)
        ex = [(1, [tp[0]], tl[0])] if '1' in cfg.otouch else []
        Cs.append(att_step(p, 3, qk=(1, False), **N, dma=True, dmalist=w0, xv=[(33, "\n".join(chk))]))
        Cs.append(att_step(p, 0, qk=(1, False), **N, vreads='head', dma=True, dmalist=w0, extra=ex))
    elif kind == 't30':
        w0 = wo_issue(0); w1 = wo_issue(1)
        tl, tp = otouch(0)
        ex = [(25, [tp[1]], tl[1])] if '1' in cfg.otouch else []
        Cs.append(att_step(p, 1, qk=(1, False), **N, vreads='tail', dma=True, dmalist=w0, xs=[(33, x) for k, x in enumerate(wo_adv())], extra=ex))
        Cs.append(att_step(p, 2, qk=(1, False), **N, kreads=True, bar=None, dma=True, dmalist=w1))
        Cs.append(att_step(p, 3, qk=(1, False), **N, dma=True, dmalist=w1))
        Cs.append(att_step(p, 0, qk=(1, False), **N, vreads='head', dma=True, dmalist=w1))
    elif kind == 'final':
        w1 = wo_issue(1); w2 = wo_issue(2)
        Cs.append(att_step(p, 1, qk=(1, False), **N, vreads='tail', dma=True, dmalist=w1, xs=[(33, x) for k, x in enumerate(wo_adv())], extra=([(25, [], chk1_load())] if cfg.park else [])))
        chk = ["\n".join(["s_waitcnt vmcnt(@chk1)"] + chk1_test() + [f"s_or_b32 s{sT}, s{sT}, s{sBad0}", f"s_cmp_eq_u32 s{sT}, 0", "s_cbranch_scc1 SPIN1", "SPIN1_RET:"])] if cfg.park else []
        Cs.append(att_step(p, 2, qk=(1, False), **N, epi=(1, 0), xs=[(1, "s_barrier")], extra=[(4 + 4*i, pre, d) for i, (pre, d) in enumerate(w2)], post=chk))
        o0 = o_issue(0); o1 = o_issue(1)
        Cs.append(att_step(p, 3, **N, epi=(1, 1), xs=[(4 + k, x) for k, x in enumerate(wo_adv())] + [(31 + k, x) for k, x in enumerate(o_adv())],
                           extra=[(pos, [], d) for pos, d in zip((4, 6, 12, 14, 20, 22, 28, 30), o0)]))
        Cs.append(att_step(p, 0, pv=False, epi=(1, 2), xs=[(31 + k, x) for k, x in enumerate(o_adv())],
                           extra=[(pos, [], d) for pos, d in zip((4, 6, 12, 14, 20, 22, 28, 30), o1)]))
        e = epi_stream(1, 3); o2 = o_issue(2)
        L = [f"v_subrev_u32 v{vPR}, {VBASE}, v{vVl}", "s_waitcnt vmcnt(@pw0)", "s_barrier"]
        wr = wreads(0) + wreads(1) + wreads(2)
        for i, x in enumerate(e):
            L.append(x)
            if i % 6 == 5 and o2: L.append(o2.pop(0))
            if i % 2 == 1 and i > 8 and wr: L.append(wr.pop(0))
        L += o2 + wr + o_adv() + flag_or(1)
        p.raw(L)
    return Cs

def loop(p, label, task, n):
    p.raw([f"s_mov_b32 s{sCnt}, {n}"])
    ctl = (f"s_sub_u32 s{sCnt}, s{sCnt}, 1", f"s_cmp_lg_u32 s{sCnt}, 0", f"s_cbranch_scc1 {label}")
    p.label(label)
    n0 = len(p.out); nops0 = p.nops
    p.inloop = True
    Cs = body(p, 'loop', task, ctl)
    first = [x.text for x in p.out[n0:]]
    n1 = len(p.out)
    body(p, 'loop', task, ctl)
    second = [x.text for x in p.out[n1:]]
    del p.out[n1:]
    p.inloop = False
    assert getattr(cfg, 'strip', '') or first == second, "loop body not steady: " + str([(a, b) for a, b in zip(first, second) if a != b][:5])
    assert p.nops == nops0, "hazard nops in steady loop"
    assert Cs == [2, 2, 2, 2] or getattr(cfg, 'tstamp', False), Cs
    return len(first)

def stamp(p, idx):
    if cfg.stamps:
        keep = list(p.pend)
        p.raw(["s_memrealtime s[98:99]", "s_memtime s[100:101]", "s_waitcnt lgkmcnt(0)", f"v_writelane_b32 v{vST}, s98, {2*idx}", f"v_writelane_b32 v{vST}, s100, {2*idx+1}"])
        p.pend = keep

def o_step(p, k, ctl=None):
    last = 15; D = 3
    mf = []
    for nb in range(8):
        for q in range(2):
            c = vr(ACC+4*(nb*2+q))
            for s in range(4):
                mf.append(f"{MF} {c}, {vr(WF+16*(nb % 4)+4*s)}, {ar(32*(k % 4)+16*q+4*s)}, {'0' if (k == 0 and s == 0) else c}")
    g = [dict(m=None, s=[f"s_waitcnt vmcnt(@po{k})"], v=[])] + newgaps(mf)
    G = lambda i: g[1+i]
    vm = set()
    if k + D <= last: vm = {1+4*i for i in range(8)} | {41+3*i for i in range(8)}
    if k % 4 == 0 and 4 <= k < 12: vm.add(33)
    if k == 15: vm.add(20)
    if k == 13: vm.add(54)
    if k == 14: vm |= {14+3*i for i in range(16)}
    for nb in range(8):
        t = nb + 3
        rd = wreads(t) if t < 8 else (wreads(t-8) if k < last else [])
        free = [x for x in range(8*nb, 8*nb+8) if x not in vm]
        extra = 8 - len(free)
        for x in free:
            n = 2 if extra > 0 and ((x+1) in vm or (x-1) in vm or free[-extra:].count(x)) else 1
            if n == 2: extra -= 1
            for _ in range(n):
                if rd: G(x)['v'].append(rd.pop(0))
        assert not rd
    if k < last:
        G(38)['s'].append(f"s_waitcnt vmcnt(@pw{k+1}" + ("+ost1" if k == 1 else "") + ")")
        G(39)['s'].append("s_barrier")
        G(39)['v'].append(f"v_add_u32 v{vPR}, {(SIG[(k+1) % 4] - VBASE) & 0xffffffff}, v{vVl}")
    if k == 0:
        G(40)['v'].append(f"ds_read_b32 v{vM2}, v{vM}")
        G(50)['v'].append(f"v_readfirstlane_b32 s{sT2}, v{vM2}")
        G(52)['s'] += [f"s_cmp_lg_u32 s{sT2}, 0", "s_cbranch_scc1 SLOW"]
    if k == 1:
        G(40)['s'] += [f"s_cmp_eq_u32 s{sNoPub}, 0", "s_cbranch_scc1 PUB2", "PUB2_RET:"]
    if k % 4 == 0 and 4 <= k < 12:
        G(33)['v'].append(chk2_load())
    if k % 4 == 1 and 4 <= k < 12:
        g[0]['s'] += ["s_waitcnt vmcnt(@chk2)"]; g[0]['v'] += chk2_test() + [f"s_cmp_lg_u32 s{sT}, 8", "s_cbranch_scc1 SPIN2", "SPIN2_RET:"]
        if '2' in cfg.otouch:
            G(2)['s'].append(f"s_lshl_b32 s{sT3}, s{sCnt}, 20"); G(3)['s'].append(f"s_sub_u32 s{sT3}, 0x210000, s{sT3}")
            G(4)['v'].append(otouch(1)[0][0]); G(34)['s'].append(f"s_add_u32 s{sT3}, s{sT3}, 0x20000"); G(35)['v'].append(otouch(1)[0][1])
    if k == 12:
        G(2)['s'] += [f"s_cmp_eq_u32 s{sWv}, 0", "s_cbranch_scc1 TICKET", "TICKET_RET:"]
    if k == 13:
        G(36)['s'] += [f"s_cmp_eq_u32 s{sWv}, 0", "s_cbranch_scc1 TICKET2", "TICKET2_RET:"]
        G(40)['v'].append(f"ds_read_b32 v{vM2}, v{vM} offset:0")
        G(52)['v'].append(f"v_readfirstlane_b32 s{sRole}, v{vM2}")
    if k == 13:
        G(54)['v'].append(f"global_load_dword v{vCk}, v{vZ}, {sr(sFl,2)} sc1 ; tag=fl13")
        for i in range(4): G(56+2*i)['v'].append(f"v_add_u32 v{20+i}, s{sXa}, v{vKV}" if i == 0 else f"v_add_u32 v{20+i}, {4096*i}, v20")
    if k == 14:
        G(11)['s'].append("s_waitcnt vmcnt(@fl13)"); G(11)['v'].append(f"v_readfirstlane_b32 s{sT}, v{vCk}")
        G(12)['s'] += [f"s_and_b32 s{sOK}, s{sT}, s{sRole}"]; G(13)['s'] += [f"s_lshl_b32 s{sPp+2}, s{sOK}, 16"]
        for t in range(16): G(14+3*t)['v'].append(f"buffer_load_dwordx4 {vr(PX+4*t)}, v{20 + (t>>2)}, {sr(sPp)}, 0 offen offset:{(t&3)*1024} sc1")
    if k == 15:
        G(20)['v'].append(f"global_load_dword v{vCk}, v{vZ}, {sr(sFl,2)} sc1")
    if k + D <= last:
        for i, d in enumerate(o_issue(k + D)): G(1+4*i)['v'].append(d)
        for i, x in enumerate(o_adv()): G(30+i)['s'].append(x)
        for i, (pre, d) in enumerate(wo_issue(k + D)):
            G(41+3*i-1)['s'] += pre; G(41+3*i)['v'].append(d)
        G(63)['s'] += wo_adv()
    if getattr(cfg, 'tstamp', False) == 'o':
        G(34)['s'].append("s_mov_b32 m0, s3"); G(35)['v'].append(f"v_writelane_b32 v{vTs}, s96, m0")
        G(36)['s'].insert(0, "s_memrealtime s[96:97]"); G(37)['s'].append("s_add_u32 s3, s3, 1")
    if ctl:
        G(60)['s'].append(ctl[0]); g[-1]['s'].append(ctl[1]); g[-1]['v'].append(ctl[2])
    p.gaps(g)

def o_phase(p):
    p.label("O_STEP0")
    for k in range(4): o_step(p, k)
    p.raw([f"s_mov_b32 s{sCnt}, 2"])
    p.label("LOOP_O")
    for rep in range(2):
        n0 = len(p.out)
        for k in range(4+4*rep, 8+4*rep): o_step(p, k, (f"s_sub_u32 s{sCnt}, s{sCnt}, 1", f"s_cmp_lg_u32 s{sCnt}, 0", "s_cbranch_scc1 LOOP_O") if k % 4 == 3 else None)
        cur = [x.text.split(';')[0] for x in p.out[n0:]]
        if rep == 0: first = cur
        else:
            same_or_stricter(first, cur)
            del p.out[n0:]
    for k in range(12, 16): o_step(p, k)
    stamp(p, 8)
    L = [f"s_cmp_lg_u32 s{sRole}, 0", "s_cbranch_scc1 X_RECV", "s_nop 7"]
    for t in range(16): L.append(f"buffer_store_dwordx4 {vr(ACC+4*t)}, v{20 + (t>>2)}, {sr(sP)}, 0 offen offset:{(t&3)*1024} sc1")
    L += ["v_mov_b32 v25, 1", "s_waitcnt vmcnt(0)", "s_barrier", f"s_cmp_lg_u32 s{sWv}, 0", "s_cbranch_scc1 X_DONE", "s_mov_b64 exec, 1",
          f"global_store_dword v{vZ}, v25, {sr(sFl,2)} sc1", "s_mov_b64 exec, -1", "s_branch X_DONE"]
    p.raw(L)
    p.trace.append(Ins("s_waitcnt vmcnt(0)"))
    L = ["X_RECV:", "s_waitcnt vmcnt(0)", f"s_cmp_lg_u32 s{sOK}, 0", "s_cbranch_scc1 X_HAVE", f"v_readfirstlane_b32 s{sT}, v{vCk}", f"s_cmp_eq_u32 s{sT}, 1", "s_cbranch_scc1 X_POLLED",
         "X_POLL:", f"global_load_dword v{vCk}, v{vZ}, {sr(sFl,2)} sc1", "s_waitcnt vmcnt(0)", f"v_readfirstlane_b32 s{sT}, v{vCk}", f"s_cmp_eq_u32 s{sT}, 1", "s_cbranch_scc1 X_POLLED",
         f"s_sub_u32 s{sSpin}, s{sSpin}, 1", "s_cbranch_scc1 X_POLLED", "s_sleep 1", "s_branch X_POLL", "X_POLLED:"]
    for t in range(16): L.append(f"buffer_load_dwordx4 {vr(PX+4*t)}, v{20 + (t>>2)}, {sr(sP)}, 0 offen offset:{(t&3)*1024} sc1 ; tag=p{t}")
    L += ["X_HAVE:", f"s_lshl_b32 s{sT2}, s{sRh}, 7", f"s_lshl_b32 s{sT}, s{sWv}, 5", f"s_add_u32 s{sT}, s{sT}, s{sT2}", f"v_and_b32 v24, 15, v0", f"v_add_u32 v24, s{sT}, v24",
          f"v_lshlrev_b32 v24, 11, v24", f"v_bfe_u32 v25, v0, 4, 2", f"v_lshl_add_u32 v24, v25, 4, v24", f"v_add_u32 v25, 32768, v24"]
    for j in range(4):
        for q in range(2):
            ta, tb = (2*j)*2 + q, (2*j+1)*2 + q
            ca, cb = ACC + 4*ta, ACC + 4*tb
            o = 28 + 4*((2*j+q) & 1)
            L += [f"s_waitcnt vmcnt(@p{tb})"]
            for c, t in ((ca, ta), (cb, tb)):
                L += [f"v_pk_add_f32 {vr(c,2)}, {vr(c,2)}, {vr(PX+4*t,2)}", f"v_pk_add_f32 {vr(c+2,2)}, {vr(c+2,2)}, {vr(PX+2+4*t,2)}"]
            L += [f"v_cvt_pk_bf16_f32 v{o}, v{ca}, v{ca+1}", f"v_cvt_pk_bf16_f32 v{o+1}, v{ca+2}, v{ca+3}", f"v_cvt_pk_bf16_f32 v{o+2}, v{cb}, v{cb+1}", f"v_cvt_pk_bf16_f32 v{o+3}, v{cb+2}, v{cb+3}",
                  f"v_permlane32_swap_b32 v{o}, v{o+2}", f"v_permlane32_swap_b32 v{o+1}, v{o+3}", f"v_permlane16_swap_b32 v{o}, v{o+2}", f"v_permlane16_swap_b32 v{o+1}, v{o+3}",
                  f"buffer_store_dwordx4 {vr(o)}, v{24+q}, {sr(sOut)}, 0 offen offset:{j*64} {cfg.out_flags}"]
    L += ["X_DONE:"]
    p.raw(L)

def publish(val):
    return [f"s_lshl_b32 s{sT3}, s{sKh}, 2", f"v_mov_b32 v{vCk}, s{sT3}", f"v_mov_b32 v{vCk+1}, {val}", "s_mov_b64 exec, 1",
            f"global_atomic_add v{vCk}, v{vCk+1}, {sr(sCt,2)} sc1", "s_mov_b64 exec, -1"]

def out_of_line(p):
    def seg(L):
        p.pend = []; p.trace.append(Ins("s_waitcnt vmcnt(0) lgkmcnt(0)")); p.trace.append(Ins("s_nop 15")); p.trace.append(Ins("s_nop 15"))
        p.raw(L)
    seg(["PUB1:", f"v_mov_b32 v{vM}, {FLAG}", f"ds_read_b32 v{vM2}, v{vM}", "s_waitcnt lgkmcnt(0)", f"v_readfirstlane_b32 s{sT}, v{vM2}", f"s_cmp_lg_u32 s{sT}, 0", "s_cbranch_scc1 PUB1_RET"]
        + publish("1") + ["s_branch PUB1_RET"])
    seg(["TICKET2:", "s_waitcnt vmcnt(8)", "s_mov_b64 exec, 1", f"ds_write_b32 v{vM}, v{vCk}", "s_mov_b64 exec, -1", "s_waitcnt lgkmcnt(0)", "s_branch TICKET2_RET"])
    seg(["TICKET:", f"v_mov_b32 v{vCk+1}, 1", "s_mov_b64 exec, 1", f"global_atomic_add v{vCk}, v{vZ}, v{vCk+1}, {sr(sFl,2)} offset:128 sc0 sc1", "s_mov_b64 exec, -1", "s_branch TICKET_RET"])
    seg(["PUB2:"] + publish("0x10000") + ["s_branch PUB2_RET"])
    seg(["SPIN1:", f"s_sub_u32 s{sSpin}, s{sSpin}, 1", "s_cbranch_scc1 SPIN1_RET", "s_sleep 2", chk1_load(), "s_waitcnt vmcnt(0)"] + chk1_test() + [f"s_cmp_eq_u32 s{sT}, 0", "s_cbranch_scc1 SPIN1", "s_branch SPIN1_RET"])
    seg(["SPIN2:", f"s_sub_u32 s{sSpin}, s{sSpin}, 1", "s_cbranch_scc1 SPIN2_RET", "s_sleep 2", chk2_load(), "s_waitcnt vmcnt(0)"] + chk2_test() + [f"s_cmp_lg_u32 s{sT}, 8", "s_cbranch_scc1 SPIN2", "s_branch SPIN2_RET"])

def slow_path(p):
    L = []
    vMo = 10
    sBits, sTask = sCur, sNxt
    A = L.append
    A("SLOW:")
    A(f"s_mov_b32 s{sBits}, s{sT2}")
    A(f"s_bitcmp1_b32 s{sBits}, 0"); A("s_cbranch_scc1 SLOW_T0")
    A("SLOW_T1:"); A(f"s_mov_b32 s{sTask}, 1"); A(f"s_and_b32 s{sBits}, s{sBits}, 1")
    for r in range(64): A(f"v_accvgpr_mov_b32 a{aQ[0]+r}, a{aQ[1]+r}")
    A("s_branch SLOW_TASK")
    A("SLOW_T0:"); A(f"s_mov_b32 s{sTask}, 0")
    A("SLOW_TASK:")
    A(f"s_waitcnt vmcnt(0) lgkmcnt(0)"); A("s_barrier")
    A(f"s_lshl_b32 s{sT}, s{sTask}, 2"); A(f"s_lshr_b32 s{sMk}, s{sBad}, s{sT}")
    A(f"s_lshl_b32 s{sT}, s{sTask}, 18"); A(f"s_add_u32 s{sSoff}, s{sW4}, s{sT}")
    for r in range(128): A(f"v_mov_b32 v{O0+r}, 0")
    for r in range(16): A(f"v_mov_b32 v{L0+r}, 0")
    for q in range(4): A(f"v_mov_b32 v{vMo+q}, 0xff800000")
    A(f"v_mov_b32 v{vK}, v{vKl}"); A(f"v_mov_b32 v{vV}, v{vVl}")
    A(f"s_mov_b32 s{sCnt}, 16")
    A("SLOW_LOOP:")
    for isV in range(2):
        for i in range(4):
            A(f"s_add_u32 m0, s{sKVm}, {isV*VBASE + i*32}"); A("s_nop 0"); A(kv_dma(sV if isV else sK, i, sSoff))
    A(f"s_add_u32 s{sSoff}, s{sSoff}, 16384")
    A("s_waitcnt vmcnt(0)"); A("s_barrier")
    for kb in range(4):
        for s in range(4): A(kread(kb, s))
    A("s_waitcnt lgkmcnt(0)")
    for r in VREADS[:16]: A(r)
    A("s_waitcnt lgkmcnt(0)")
    for r in VREADS[16:]: A(r)
    A("s_waitcnt lgkmcnt(0)"); A("s_barrier")
    for q in range(4):
        Sr = S0; Pw = P0
        A(f"s_bitcmp1_b32 s{sMk}, {q}"); A(f"s_cbranch_scc0 SLOW_SKIP{q}")
        for kb in range(4):
            for s in range(4):
                A(f"{MF} {vr(Sr+4*kb)}, {ar(aK+16*kb+4*s)}, {ar(aQ[0]+16*q+4*s)}, {vr(Sr+4*kb) if s else '0'}")
        A(f"v_max3_f32 v{vM}, v{Sr}, v{Sr+1}, v{vMo+q}")
        for i in range(2, 16, 2): A(f"v_max3_f32 v{vM}, v{vM}, v{Sr+i}, v{Sr+i+1}")
        L.extend([f"v_mov_b32 v{vM2}, v{vM}", f"v_permlane32_swap_b32 v{vM}, v{vM2}", f"v_max_f32 v{vM}, v{vM}, v{vM2}",
              f"v_mov_b32 v{vM2}, v{vM}", f"v_permlane16_swap_b32 v{vM}, v{vM2}", f"v_max_f32 v{vM}, v{vM}, v{vM2}"])
        A(f"v_sub_f32 v14, v{vMo+q}, v{vM}"); A("v_exp_f32 v14, v14"); A(f"v_mov_b32 v{vMo+q}, v{vM}")
        for i in range(16): A(f"v_sub_f32 v{Sr+i}, v{Sr+i}, v{vM}")
        for i in range(16): A(f"v_exp_f32 v{Sr+i}, v{Sr+i}")
        for i in range(8): A(f"v_cvt_pk_bf16_f32 v{Pw+i}, v{Sr+2*i}, v{Sr+2*i+1}")
        for r in range(32): A(f"v_mul_f32 v{O0+32*q+r}, v{O0+32*q+r}, v14")
        for r in range(4): A(f"v_mul_f32 v{L0+4*q+r}, v{L0+4*q+r}, v14")
        for db in range(8):
            o = vr(O0+32*q+4*db)
            for ks in range(2): A(f"{MF} {o}, {ar(aV+8*db+4*ks)}, {vr(Pw+4*ks)}, {o}")
        for ks in range(2): A(f"{MF} {vr(L0+4*q)}, {vr(ONES)}, {vr(Pw+4*ks)}, {vr(L0+4*q)}")
        A("s_nop 7"); A(f"SLOW_SKIP{q}:")
    A(f"s_sub_u32 s{sCnt}, s{sCnt}, 1"); A(f"s_cmp_lg_u32 s{sCnt}, 0"); A("s_nop 7"); A("s_cbranch_scc1 SLOW_LOOP")
    for q in range(4):
        e = [x for x in epi_stream(1, q) if not x.startswith(('v_cmp', 's_cmp', 's_mov_b32'))]
        A(f"s_bitcmp1_b32 s{sMk}, {q}"); A(f"s_cbranch_scc0 SLOW_NOST{q}")
        A(f"s_lshl_b32 s{sOo}, s{sTask}, 16"); A(f"s_add_u32 s{sOo}, s{sOo}, {q*4096}")
        L.extend(e)
        A(f"SLOW_NOST{q}:")
    A(f"s_cmp_eq_u32 s{sTask}, 0"); A(f"s_cselect_b32 s{sT}, s{sBits}, 0"); A(f"s_bitcmp1_b32 s{sT}, 1"); A("s_cbranch_scc1 SLOW_T1")
    A(f"v_mov_b32 v{vM}, {FLAG}"); A(f"ds_write_b32 v{vM}, v{vZ}")
    A("s_waitcnt vmcnt(0) lgkmcnt(0)"); A("s_barrier")
    A(f"s_cmp_lg_u32 s{sWv}, 0"); A("s_cbranch_scc1 SLOW_PUBD")
    A(f"s_and_b32 s{sT}, s{sBits}, 1"); A(f"s_or_b32 s{sT}, s{sT}, 0x10000")
    L.extend(publish(f"s{sT}"))
    A("SLOW_PUBD:"); A(f"s_mov_b32 s{sNoPub}, 1")
    A("SLOW_SPIN:"); A(f"s_sub_u32 s{sSpin}, s{sSpin}, 1"); A("s_cbranch_scc1 SLOW_SPUN"); A("s_sleep 2"); A(chk1_load()); A("s_waitcnt vmcnt(0)"); L.extend(chk1_test()); A(f"s_cmp_eq_u32 s{sT}, 0"); A("s_cbranch_scc1 SLOW_SPIN"); A("SLOW_SPUN:")
    A(f"s_mov_b32 s{sPo}, 0"); A(f"s_mov_b32 s{sPw}, 0")
    for k in range(3):
        for pre, d in wo_issue(k): L.extend(pre + ["s_nop 0", d])
        L.extend(wo_adv() + o_issue(k) + o_adv())
    A(f"v_subrev_u32 v{vPR}, {VBASE}, v{vVl}"); A("s_waitcnt vmcnt(0)"); A("s_barrier")
    L.extend(wreads(0) + wreads(1) + wreads(2)); A("s_waitcnt lgkmcnt(0)"); A("s_branch O_STEP0")
    p.pend = []; p.trace.append(Ins("s_waitcnt vmcnt(0) lgkmcnt(0)")); p.trace.append(Ins("s_nop 15")); p.trace.append(Ins("s_nop 15"))
    p.raw(L)

def rotcode():
    r = getattr(cfg, 'rot', '0')
    if r == '0': return f"s_mov_b32 s{sRot}, 0"
    if r == 'id': return f"s_lshr_b32 s{sRot}, s2, 3\ns_lshr_b32 s{sTc}, s2, 7\ns_add_u32 s{sRot}, s{sRot}, s{sTc}"
    if r == 'low': return f"s_mov_b32 s{sRot}, s2"
    if r == 'mix': return f"s_lshr_b32 s{sRot}, s2, 3\ns_lshl_b32 s{sTc}, s2, 1\ns_add_u32 s{sRot}, s{sRot}, s{sTc}"
def krotcode():
    r = cfg.krot
    if r == '8': return f"s_lshl_b32 s{sKp}, s{sT2}, 1\ns_add_u32 s{sKp}, s{sKp}, s{sT}\ns_and_b32 s{sKp}, s{sKp}, 7"
    if r == '4': return f"s_add_u32 s{sKp}, s{sT2}, s{sT}\ns_lshl_b32 s{sKp}, s{sKp}, 1\ns_and_b32 s{sKp}, s{sKp}, 7"
    if r == '2': return f"s_add_u32 s{sKp}, s{sT2}, s{sT}\ns_lshl_b32 s{sKp}, s{sKp}, 2\ns_and_b32 s{sKp}, s{sKp}, 7"
    if r == '1': return f"s_mov_b32 s{sKp}, 0"
def wotq_setup():
    if not int(cfg.wotq): return ""
    return f"""v_and_b32 v12, 63, v0
v_cmp_gt_u32 vcc, 13, v12
s_mul_i32 s{sT}, s{sWv}, 13
v_add_u32 v12, s{sT}, v12
v_lshlrev_b32 v12, 7, v12
s_lshr_b32 s{sT}, s2, 3
s_lshl_b32 s{sT}, s{sT}, 16
v_add_u32 v12, s{sT}, v12
v_mov_b32 v13, 0x40000000
v_cndmask_b32 v{vWT}, v13, v12, vcc
s_mov_b32 s{sTo}, 0"""
def gen_k1():
    p = Prog()
    p.out.append(Ins(f".p2align 8")); p.label(K1)
    if cfg.stamps: p.raw(['s_memrealtime s[96:97]', 's_memtime s[98:99]'])
    L = f"""s_cmp_ge_u32 s2, 256
s_cbranch_scc1 K1_END
s_getpc_b64 {sr(sCODE,2)}
K1_PC:
s_mov_b32 s{sCODE+2}, (CODE_END - K1_PC)
s_mov_b32 s{sCODE+3}, 0x20000
v_lshlrev_b32 v1, 7, v0
buffer_load_dword a48, v1, {sr(sCODE)}, 0 offen
v_add_u32 v2, 0x8000, v1
buffer_load_dword a48, v2, {sr(sCODE)}, 0 offen
s_bfe_u32 s3, s2, 0x10002
s_mul_i32 s{sT}, s3, 40
s_load_dwordx8 {sr(sPTR,8)}, s[0:1], s{sT}
s_add_u32 s{sT2}, s{sT}, 32
s_load_dwordx2 {sr(sWoP,2)}, s[0:1], s{sT2}
s_load_dwordx4 {sr(sOutP,4)}, s[0:1], 80
s_load_dwordx2 {sr(sWS,2)}, s[0:1], 96""".split('\n')
    p.raw(L)
    L = f"""v_lshrrev_b32 v2, 6, v0
v_and_b32 v3, 63, v0
v_readfirstlane_b32 s{sWv}, v2
v_lshlrev_b32 v{vKV}, 4, v3
s_lshr_b32 s{sT2}, s2, 6
s_bfe_u32 s{sT}, s2, 0x30003
s_and_b32 s{sRh}, s{sT}, 1
s_lshr_b32 s{sPo}, s{sT}, 1
s_and_b32 s{sKh}, s2, 1
{krotcode()}
s_bfe_u32 s{sT3}, s2, 0x10001
s_lshl_b32 s{sT3}, s{sT3}, 2
s_add_u32 s{sT2}, s{sT2}, s{sT3}
s_and_b32 s{sT3}, s2, 1
s_lshl_b32 s{sT3}, s{sT3}, 3
s_add_u32 s{sT}, s{sT}, s{sT3}
s_lshl_b32 s{sW4}, s{sWv}, 12
s_lshl_b32 s{sXm}, s{sWv}, 13
{rotcode()}
s_mul_i32 s{sKVm}, s{sWv}, 4224
s_lshl_b32 s{sKk}, s{sKp}, 1
s_lshl_b32 s{sXo}, s{sKp}, 7
s_lshl_b32 s{sWo}, s{sKk}, 18
v_lshrrev_b32 v4, 3, v3
v_lshrrev_b32 v5, 4, v3
v_and_b32 v6, 7, v3
v_xor_b32 v6, v5, v6
v_lshlrev_b32 v6, 4, v6
v_lshl_add_u32 v6, v4, 10, v6
v_lshl_add_u32 v13, v2, 16, v6
v_lshrrev_b32 v8, 1, v5
v_lshlrev_b32 v8, 4, v8
v_and_b32 v9, 1, v5
v_lshl_add_u32 v8, v9, 2, v8
v_and_b32 v9, 1, v2
v_lshl_add_u32 v8, v9, 3, v8
v_lshlrev_b32 v8, 13, v8
v_and_b32 v9, 15, v3
v_lshl_add_u32 v8, v9, 4, v8
v_lshrrev_b32 v10, 1, v2
v_lshl_add_u32 v8, v10, 8, v8
v_lshrrev_b32 v10, 1, v9
v_xor_b32 v10, v10, v5
v_lshlrev_b32 v10, 4, v10
v_lshl_add_u32 v10, v9, 7, v10
v_lshl_add_u32 v4, v2, 13, v10
v_and_b32 v11, 1, v5
v_lshlrev_b32 v11, 2, v11
v_lshrrev_b32 v12, 2, v9
v_add_u32 v11, v11, v12
v_mul_u32_u24 v11, 1056, v11
v_lshrrev_b32 v12, 1, v5
v_lshl_add_u32 v11, v12, 9, v11
v_and_b32 v12, 3, v3
v_lshl_add_u32 v{vWl}, v12, 4, v11
v_xor_b32 v5, 64, v4
v_mov_b32 v2, v13
v_xor_b32 v3, 64, v13
v_add_u32 v{vW0+3}, {3*7136}, v8
v_add_u32 v{vW0+1}, {7136}, v8
v_mov_b32 v{vW0}, v8
v_add_u32 v{vW0+2}, {2*7136}, v{vW0}
s_waitcnt lgkmcnt(0)
{'v_writelane_b32 v15, s96, 0' if cfg.stamps else ''}
{'v_writelane_b32 v15, s98, 1' if cfg.stamps else ''}
s_mov_b32 s{sPw}, s{sT2}
s_lshl_b32 s{sT3}, s{sT2}, 18
s_add_u32 s{sX}, s{sPTR}, s{sT3}
s_addc_u32 s{sX+1}, s{sPTR+1}, 0
s_lshl_b32 s{sT3}, s{sT}, 9
s_add_u32 s{sW}, s{sPTR+6}, s{sT3}
s_addc_u32 s{sW+1}, s{sPTR+7}, 0
s_sub_u32 s{sW+2}, 0x400000, s{sT3}
s_lshl_b32 s{sT2}, s{sT2}, 5
s_lshl_b32 s{sT}, s{sT}, 1
s_add_u32 s{sT2}, s{sT2}, s{sT}
s_lshl_b32 s{sT3}, s{sT2}, 18
{'s_and_b32 s%d, s%d, 0x380000' % (sT3, sT3) if getattr(cfg, 'kvshare', False) else ''}
s_add_u32 s{sK}, s{sPTR+2}, s{sT3}
s_addc_u32 s{sK+1}, s{sPTR+3}, 0
s_add_u32 s{sV}, s{sPTR+4}, s{sT3}
s_addc_u32 s{sV+1}, s{sPTR+5}, 0
s_lshl_b32 s3, s3, 8
s_add_u32 s{sT2}, s{sT2}, s3
s_lshl_b32 s{sT3}, s{sT2}, 16
s_add_u32 s{sO}, s{sWS}, s{sT3}
s_addc_u32 s{sO+1}, s{sWS+1}, 0
s_mov_b32 s{sX+2}, 0x40000
s_mov_b32 s{sX+3}, 0x20000
s_mov_b32 s{sW+3}, 0x20000
s_mov_b32 s{sK+2}, 0x80000
s_mov_b32 s{sK+3}, 0x20000
s_mov_b32 s{sV+2}, 0x80000
s_mov_b32 s{sV+3}, 0x20000
s_mov_b32 s{sO+2}, 0x20000
s_mov_b32 s{sO+3}, 0x20000""".split('\n')
    p.raw(L)
    L = [f"s_add_u32 s{sXd}, s{sXm}, {XS0}"]
    for pre, d in w_dma_list(0, 3*KT) + x_dma_list(0) + [(w_adv(), None)] + w_dma_list(1, KT):
        L += pre + (["s_nop 0"] if pre and 'm0' in pre[-1] else []) + ([d] if d else [])
    L += [f"s_mov_b32 s{sWs}, {3*KT}", f"s_mov_b32 s{sTog}, 0", f"s_mov_b32 s{sXs}, {XS0}", f"s_mov_b32 s{sJ}, 0", f"s_and_b32 s{sK0}, s{sRot}, 15", f"s_lshl_b32 s{sK0}, s{sK0}, 14", f"s_add_u32 s{sK0}, s{sK0}, s{sW4}"]
    L += f"""s_lshr_b32 s{sT}, s3, 5
s_add_u32 s{sT}, s{sT}, s{sPw}
s_lshl_b32 s{sT2}, s{sT}, 4
s_add_u32 s{sCt}, s{sDbgP}, s{sT2}
s_addc_u32 s{sCt+1}, s{sDbgP+1}, 0
s_lshl_b32 s{sT}, s{sT}, 1
s_add_u32 s{sT}, s{sT}, s{sKh}
s_lshl_b32 s26, s{sT}, 20
s_lshl_b32 s27, s{sPo}, 8
s_lshl_b32 s{sT}, s{sPw}, 19
s_add_u32 s{sT}, s{sT}, s27
s_lshl_b32 s{sT2}, s3, 2
s_add_u32 s{sT}, s{sT}, s{sT2}
s_add_u32 s{sOut}, s{sOutP}, s{sT}
s_addc_u32 s{sOut+1}, s{sOutP+1}, 0
s_sub_u32 s{sOut+2}, 0x400000, s{sT}
s_mov_b32 s{sOut+3}, 0x20000
s_lshr_b32 s{sT2}, s2, 1
s_lshl_b32 s{sT}, s{sT2}, 16
s_add_u32 s{sT}, s{sT}, {PART_OFF}
s_add_u32 s{sP}, s{sWS}, s{sT}
s_addc_u32 s{sP+1}, s{sWS+1}, 0
s_mov_b32 s{sP+2}, 0x10000
s_mov_b32 s{sP+3}, 0x20000
s_mov_b64 {sr(sPp,2)}, {sr(sP,2)}
s_lshl_b32 s{sXa}, s{sWv}, 14
s_mov_b32 s{sPp+3}, 0x20000
s_lshl_b32 s{sT}, s{sT2}, 8
s_add_u32 s{sT}, s{sT}, {FLAG_OFF}
s_add_u32 s{sFl}, s{sWS}, s{sT}
s_addc_u32 s{sFl+1}, s{sWS+1}, 0
s_lshl_b32 s{sT}, s{sKh}, 21
s_add_u32 s{sWoS}, s{sWoP}, s{sT}
s_addc_u32 s{sWoS+1}, s{sWoP+1}, 0
s_mov_b32 s{sWoS+2}, 0x200000
s_mov_b32 s{sWoS+3}, 0x20000
s_mul_i32 s{sM8}, s{sWv}, 8448
s_mov_b32 s{sSpin}, 0x100000
s_cmp_eq_u32 s{sWv}, 0
s_cselect_b32 s{sPubAt}, 10, 0xffff
v_and_b32 v13, 63, v0
v_cmp_gt_u32 vcc, {int(cfg.kvpf)}, v13
v_lshlrev_b32 v{vPF}, 7, v13
v_mov_b32 v13, 0x40000000
v_cndmask_b32 v{vPF}, v13, v{vPF}, vcc
s_add_u32 s{sPF}, s{sW4}, {4*16384 + 4096 - 128*int(cfg.kvpf)}
{wotq_setup()}
v_and_b32 v12, 1, v0
v_lshlrev_b32 v12, 7, v12
v_mov_b32 v13, 0
global_store_dword v12, v13, {sr(sFl,2)} sc1""".split('\n')
    L += [f"s_mov_b32 s{sC}, {f2u(CSCALE):#x}", f"s_mov_b32 s{sC+1}, {f2u(CSCALE):#x}",
          f"s_mov_b32 s{sBad}, 0",
          f"v_mov_b32 v12, {FLAG}", f"v_mov_b32 v13, 0", f"ds_write_b32 v12, v13",
          f"v_add_u32 v{vXr}, {XS0}, v{vXl0}", f"v_add_u32 v{vWr}, {3*KT}, v{vWl}",
          f"s_waitcnt vmcnt(@w0+x0) lgkmcnt(0)", "s_barrier"]
    for qb in range(4): L.append(xread(0, qb))
    for i, pos in enumerate(WPOS):
        if pos < 64: L.append(wread(i//2, i & 1))
    p.raw(L)
    stamp(p, 1)
    if getattr(cfg, 'tstamp', False) == 'q': p.raw(['s_mov_b32 s3, 0', 's_mov_b32 s96, 0'])
    q_phase(p)
    stamp(p, 2)
    if getattr(cfg, 'tstamp', False) == 'q': p.raw(["s_waitcnt lgkmcnt(0)", "v_writelane_b32 v14, s96, 15", "s_memrealtime s[96:97]", "s_waitcnt lgkmcnt(0)", "v_writelane_b32 v14, s96, 16"])
    q_epilogue(p)
    L = f"""{'v_mov_b32 v%d, v14' % vTs if getattr(cfg, 'tstamp', False) == 'q' else ''}
s_add_u32 s{sOr}, s{sWS}, s26
s_addc_u32 s{sOr+1}, s{sWS+1}, 0
s_mov_b32 s{sOr+2}, {0 if getattr(cfg, 'noO', False) else 0x100000}
s_mov_b32 s{sOr+3}, 0x20000
s_add_u32 s{sWp}, s{sWoS}, s27
s_addc_u32 s{sWp+1}, s{sWoS+1}, 0
{'s_mov_b32 s%d, 0' % (sWp+2) if getattr(cfg, 'noW', False) else 's_sub_u32 s%d, 0x200000, s27' % (sWp+2)}
s_mov_b32 s{sWp+3}, 0x20000
s_lshl_b32 s{sT}, s{sWv}, 13
s_lshl_b32 s{sT2}, s{sRh}, 15
s_add_u32 s{sT}, s{sT}, s{sT2}
v_add_u32 v{vPO}, s{sT}, v{vKV}
v_add_u32 v{vPO2}, 4096, v{vPO}
v_bfe_u32 v7, v0, 5, 1
v_bfe_u32 v8, v0, 4, 1
v_lshlrev_b32 v7, 5, v7
v_lshl_add_u32 v7, v8, 4, v7
v_bfe_u32 v8, v0, 7, 1
v_lshl_add_u32 v7, v8, 6, v7
v_bfe_u32 v8, v0, 6, 1
v_lshl_add_u32 v7, v8, 3, v7
v_and_b32 v8, 15, v0
v_lshlrev_b32 v8, 4, v8
v_lshl_add_u32 v{vPW}, v7, 10, v8
v_add_u32 v{vPW2}, 4096, v{vPW}
v_mov_b32 v{vZ}, 0
v_and_b32 v7, 63, v0
v_lshlrev_b32 v7, 7, v7
s_lshl_b32 s{sT}, s{sWv}, 18
s_lshl_b32 s{sT2}, s{sRh}, 15
s_add_u32 s{sT}, s{sT}, s{sT2}
s_lshl_b32 s{sT2}, s27, 5
s_add_u32 s{sT}, s{sT}, s{sT2}
v_add_u32 v{vOT}, s{sT}, v7
v_and_b32 v7, 63, v0
v_cmp_gt_u32 vcc, 12, v7
s_mul_i32 s{sT}, s{sWv}, 12
v_add_u32 v7, s{sT}, v7
v_lshlrev_b32 v7, 7, v7
s_lshr_b32 s{sT}, s2, 3
s_lshl_b32 s{sT}, s{sT}, 16
v_add_u32 v7, s{sT}, v7
v_mov_b32 v8, 0x40000000
v_cndmask_b32 v{vTo}, v8, v7, vcc
s_mov_b32 s{sTo}, 0
s_mov_b32 s{sPo}, 0
s_mov_b32 s{sPw}, 0
s_mov_b32 s{sNoPub}, s{sWv}
v_mov_b32 v{vR+1}, {LBOUND:#x}
s_mov_b32 s{sCur}, 0
s_mov_b32 s{sTc}, 3""".split('\n') + soff_adv()
    p.raw(L)
    if getattr(cfg, 'tstamp', False) in (True, 'o'): p.raw(["s_mov_b32 s3, 0", "s_mov_b32 s96, 0"])
    stamp(p, 3)
    att_step(p, 3, qk=(0, True))
    att_step(p, 0, qk=(0, True), sm=True, vreads='head', extra=[(3 + 8*i, pre, d) for i, (pre, d) in enumerate(kv_static_list(False, 3))])
    info = {}
    info['first0'] = body(p, 'first', 0)
    info['loopA'] = loop(p, "LOOP_A", 0, 14)
    stamp(p, 4)
    info['last'] = body(p, 'last', 0)
    info['first1'] = body(p, 'first', 1)
    info['loopB'] = loop(p, "LOOP_B", 1, 11 if cfg.park else 12)
    if cfg.park: info['t28'] = body(p, 't28', 1)
    info['t29'] = body(p, 't29', 1)
    info['t30'] = body(p, 't30', 1)
    stamp(p, 5)
    info['final'] = body(p, 'final', 1)
    stamp(p, 6)
    o_phase(p)
    if cfg.stamps:
        p.raw(["s_waitcnt vmcnt(0)"])
        stamp(p, 9)
        L = [f"s_lshl_b32 s{sT}, s2, 10", f"s_add_u32 s{sT}, s{sT}, 0x4000000", f"s_add_u32 s98, s{sWS}, s{sT}", f"s_addc_u32 s99, s{sWS+1}, 0",
             "v_lshlrev_b32 v20, 2, v0", f"global_store_dword v20, v{vST}, s[98:99]"]
        if getattr(cfg, 'tstamp', False):
            if cfg.tstamp in (True, 'o'): L += ["s_mov_b32 m0, s3", "s_nop 1", f"v_writelane_b32 v{vTs}, s96, m0"]
            L += [f"s_add_u32 s98, s98, 0x40000", f"s_addc_u32 s99, s99, 0", f"global_store_dword v20, v{vTs}, s[98:99]"]
        p.raw(L)
    p.label("K1_END"); p.raw(["s_endpgm"])
    out_of_line(p)
    slow_path(p)
    bad = check_hazards(p.trace); assert getattr(cfg, 'strip', '') or not bad, bad[:5]
    bad = check_counters(p.trace); assert getattr(cfg, 'tstamp', False) or not bad, bad[:5]
    return p, info

def kd(name, vg, acc, sg=102):
    return f""".amdhsa_kernel {name}
  .amdhsa_next_free_vgpr {vg}
  .amdhsa_next_free_sgpr {sg}
  .amdhsa_accum_offset {acc}
  .amdhsa_group_segment_fixed_size 0
  .amdhsa_kernarg_size 104
  .amdhsa_user_sgpr_count 2
  .amdhsa_user_sgpr_kernarg_segment_ptr 1
  .amdhsa_system_sgpr_workgroup_id_x 1
.end_amdhsa_kernel"""

def generate():
    hdr = [l for l in open("cdna_kernels/" + NAME + ".s.ref").read().split('\n') if l.startswith(';') and '@launch' not in l and 'Override' not in l and 'grid=ceil' not in l]
    hdr = hdr[:15]
    p1, info = gen_k1()
    T = hdr + [f"; @launch grid=(256,1,1) block=(256,1,1) lds={LDS1}", '.amdgcn_target "amdgcn-amd-amdhsa--gfx950"', ".text", f".globl {K1}", f".type {K1},@function"]
    T += [x.text for x in p1.out] + ["CODE_END:", '.section .rodata,"a"', ".p2align 6", kd(K1, 512, 256)]
    return "\n".join(T) + "\n", info, p1

if __name__ == "__main__":
    out = sys.argv[1] if len(sys.argv) > 1 else "cdna_kernels/" + NAME + ".s"
    for a in sys.argv[2:]:
        k, v = a.split('=', 1)
        setattr(cfg, k, {'True': True, 'False': False}.get(v, v))
    s, info, p1 = generate()
    open(out, "w").write(s)
    print(info, "nops", p1.nops, "lines", s.count('\n'))
```
